```python
import torch

def _softmax(x, axis=-1):
    return torch.softmax(x, dim=axis)
def _gelu(x):
    return torch.nn.functional.gelu(x, approximate="tanh")
def _silu(x):
    return torch.nn.functional.silu(x)
def _sigmoid(x):
    return torch.sigmoid(x)
def _layernorm(x, axis=-1, eps=1e-5):
    m = x.mean(dim=axis, keepdim=True)
    v = x.var(dim=axis, keepdim=True, unbiased=False)
    return (x - m) / torch.sqrt(v + eps)
def _scatter_add(tgt, idx, src, axis=0):
    return tgt.clone().index_add_(axis, idx, src)
def _segment_sum(src, seg, n):
    out = torch.zeros((n,) + src.shape[1:], dtype=src.dtype)
    return out.index_add_(0, seg, src)
def _pad(x, pw):
    flat = tuple(v for pair in reversed(pw) for v in pair)
    return torch.nn.functional.pad(x, flat)

kernel_name = 'concat_heads__mha_block_cached__mha_block_cached__decode'

def setup_inputs():

    _w = (lambda a: (lambda t: t.to(torch.bfloat16) if t.is_floating_point() else t)(torch.as_tensor(a)))
    def _A_setup():
        B, Sq, D = 8, 1, 1024
        H, Sk, Dh = 32, 4096, 128
        return {
            "x": _w((lambda *s: torch.randn(*s, dtype=torch.bfloat16) * 0.8)(B, Sq, D)),
            "k_cache": _w((lambda *s: torch.randn(*s, dtype=torch.bfloat16) * 0.8)(B, H, Sk, Dh)),
            "v_cache": _w((lambda *s: torch.randn(*s, dtype=torch.bfloat16) * 0.05)(B, H, Sk, Dh)),
            "wq": _w((lambda *s: torch.randn(*s, dtype=torch.bfloat16) * 0.8)(D, H * Dh) * (D ** -0.5)),
            "wo": _w((lambda *s: torch.randn(*s, dtype=torch.bfloat16) * 0.05)(H * Dh, D) * ((H * Dh) ** -0.5)),
        }
    _A_in = _A_setup()

    def _B_setup():
        B, Sq, D = 8, 1, 1024
        H, Sk, Dh = 32, 4096, 128
        return {
            "x": _w((lambda *s: torch.randn(*s, dtype=torch.bfloat16) * 0.8)(B, Sq, D)),
            "k_cache": _w((lambda *s: torch.randn(*s, dtype=torch.bfloat16) * 0.8)(B, H, Sk, Dh)),
            "v_cache": _w((lambda *s: torch.randn(*s, dtype=torch.bfloat16) * 0.05)(B, H, Sk, Dh)),
            "wq": _w((lambda *s: torch.randn(*s, dtype=torch.bfloat16) * 0.8)(D, H * Dh) * (D ** -0.5)),
            "wo": _w((lambda *s: torch.randn(*s, dtype=torch.bfloat16) * 0.05)(H * Dh, D) * ((H * Dh) ** -0.5)),
        }
    _B_in = _B_setup()

    return {
        "A_x": _A_in["x"],
        "A_k_cache": _A_in["k_cache"],
        "A_v_cache": _A_in["v_cache"],
        "A_wq": _A_in["wq"],
        "A_wo": _A_in["wo"],
        "B_x": _B_in["x"],
        "B_k_cache": _B_in["k_cache"],
        "B_v_cache": _B_in["v_cache"],
        "B_wq": _B_in["wq"],
        "B_wo": _B_in["wo"],
    }

def reference(A_x, A_k_cache, A_v_cache, A_wq, A_wo, B_x, B_k_cache, B_v_cache, B_wq, B_wo):
    def _A_ref(x, k_cache, v_cache, wq, wo):
        B, Sq, D = x.shape
        H, Dh = 32, 128
        q = (lambda x, *d: x.permute(*d))((x @ wq).reshape(B, Sq, H, Dh), 0, 2, 1, 3)
        scores = torch.einsum("bhqd,bhkd->bhqk", q, k_cache) * (Dh ** -0.5)
        p = _softmax(scores, axis=-1)
        o = torch.einsum("bhqk,bhkd->bhqd", p, v_cache)
        return (lambda x, *d: x.permute(*d))(o, 0, 2, 1, 3).reshape(B, Sq, H * Dh) @ wo

    def _B_ref(x, k_cache, v_cache, wq, wo):
        B, Sq, D = x.shape
        H, Dh = 32, 128
        q = (lambda x, *d: x.permute(*d))((x @ wq).reshape(B, Sq, H, Dh), 0, 2, 1, 3)
        scores = torch.einsum("bhqd,bhkd->bhqk", q, k_cache) * (Dh ** -0.5)
        p = _softmax(scores, axis=-1)
        o = torch.einsum("bhqk,bhkd->bhqd", p, v_cache)
        return (lambda x, *d: x.permute(*d))(o, 0, 2, 1, 3).reshape(B, Sq, H * Dh) @ wo

    a = _A_ref(A_x, A_k_cache, A_v_cache, A_wq, A_wo)
    b = _B_ref(B_x, B_k_cache, B_v_cache, B_wq, B_wo)
    return torch.concatenate([a, b], axis=-1)
```

```python
import re
TRANS = ('v_exp_f32', 'v_log_f32', 'v_rcp_f32', 'v_rsq_f32', 'v_sqrt_f32', 'v_sin_f32', 'v_cos_f32')
def regs_of(tok):
    tok = tok.strip().lstrip('-')
    if tok.startswith('abs(') or tok.startswith('|'):
        tok = tok.replace('abs(', '').replace(')', '').replace('|', '')
    m = re.fullmatch(r'([vas])(\d+)', tok)
    if m: return [(m.group(1), int(m.group(2)))]
    m = re.fullmatch(r'([vas])\[(\d+):(\d+)\]', tok)
    if m: return [(m.group(1), i) for i in range(int(m.group(2)), int(m.group(3)) + 1)]
    if tok == 'vcc': return [('s', 'vcc')]
    if tok == 'exec': return [('s', 'exec')]
    if tok == 'm0': return [('s', 'm0')]
    return []
class Ins:
    def __init__(self, text):
        self.text = text
        t = text.split(';')[0].strip()
        parts = t.split(None, 1)
        self.op = parts[0]
        rest = parts[1] if len(parts) > 1 else ''
        ops = re.split(r',\s*(?![^\[]*\])', rest) if rest else []
        self.mods = ''
        if ops:
            last = ops[-1].strip().split(None, 1)
            ops[-1] = last[0] if last else ''
            self.mods = last[1] if len(last) > 1 else ''
        self.ops = [o.strip() for o in ops]
        op = self.op
        self.valu = op.startswith('v_') and not op.startswith('v_mfma')
        self.mfma = op.startswith('v_mfma')
        self.vmem = op.startswith(('buffer_', 'global_'))
        self.ds = op.startswith('ds_')
        self.salu = op.startswith('s_')
        self.dpp = '_dpp' in op
        self.dot = op.startswith('v_dot')
        self.trans = op.replace('_e32', '').replace('_e64', '') in TRANS
        R = [regs_of(o) for o in self.ops]
        w, r = [], []
        self.srcc = []
        self.srcab = []
        self.stdata = []
        if self.mfma:
            w = R[0]; r = R[1] + R[2] + R[3]; self.srcc = R[3]; self.srcab = R[1] + R[2]
        elif self.valu:
            if op.startswith('v_cmp'):
                w = R[0]; r = sum(R[1:], [])
            elif op.startswith(('v_permlane32_swap', 'v_permlane16_swap', 'v_swap')):
                w = R[0] + R[1]; r = R[0] + R[1]
            elif op.startswith(('v_add_co', 'v_sub_co', 'v_addc_co', 'v_subb_co')):
                w = R[0] + R[1]; r = sum(R[2:], [])
            else:
                w = R[0]; r = sum(R[1:], [])
                if op.startswith(('v_fmac', 'v_dot2c', 'v_writelane')) or self.dpp:
                    r = r + R[0]
                if op.startswith('v_dot2c'): self.srcc = R[0]; self.srcab = R[1] + R[2]
                elif op.startswith('v_dot2'): self.srcc = R[3]; self.srcab = R[1] + R[2]
                if op.startswith('v_cndmask') and len(R) == 3: r = r + [('s', 'vcc')]
        elif self.vmem:
            if 'load' in op and ' lds' not in (' ' + self.mods):
                w = R[0]; r = sum(R[1:], [])
            elif 'atomic' in op and 'sc0' in self.mods:
                if op.startswith('global'): w = R[0]; r = sum(R[1:], [])
                else: w = R[0]; r = sum(R, [])
            else:
                r = sum(R, [])
                if 'store' in op and ('x4' in op or 'x3' in op):
                    self.stdata = R[0] if op.startswith('buffer') else R[1]
        elif self.ds:
            if 'read' in op or 'rtn' in op or 'permute' in op or 'swizzle' in op:
                w = R[0]; r = sum(R[1:], [])
            else:
                r = sum(R, [])
        elif self.salu:
            if R and not op.startswith(('s_cmp', 's_waitcnt', 's_nop', 's_cbranch', 's_branch', 's_barrier', 's_bitcmp', 's_setprio', 's_sleep', 's_endpgm')):
                w = R[0]; r = sum(R[1:], [])
            else:
                r = sum(R, [])
        self.w = set(w); self.r = set(r)
        self.ws = 1
        if op == 's_nop': self.ws = int(self.ops[0], 0) + 1
def need(p, c):
    n = 0
    vw = {x for x in p.w if x[0] in 'va'}
    sw = {x for x in p.w if x[0] == 's'}
    if p.valu:
        if c.dpp and vw & c.r: n = max(n, 2)
        if p.trans and c.valu and not c.trans and vw & c.r: n = max(n, 1)
        if c.mfma and vw & c.r: n = max(n, 2)
        if c.op.startswith(('v_readlane', 'v_readfirstlane')) and vw & c.r: n = max(n, 1)
        if c.op.startswith('v_permlane') and vw & c.r: n = max(n, 2)
        if sw:
            if c.vmem and sw & c.r: n = max(n, 5)
            if c.valu and sw & c.r: n = max(n, 4 if c.op.startswith(('v_readlane', 'v_writelane')) else 2)
            if c.salu and sw & c.r: n = max(n, 2)
            if c.op.startswith('s_cbranch_vcc') and ('s', 'vcc') in sw: n = max(n, 2)
        if p.dot and (c.valu or c.mfma or c.vmem or c.ds):
            base = lambda o: o.replace('_dpp', '').replace('_e32', '').replace('_e64', '')
            if c.dot and base(c.op) == base(p.op):
                if vw & set(c.srcab): n = max(n, 3)
            elif vw & (c.r | c.w): n = max(n, 3)
    if p.mfma:
        passes = 8 if '32x32' in p.op else 4
        big = {4: 8, 8: 12}[passes]
        if c.mfma:
            if vw & set(c.srcab): n = max(n, big)
            if vw & set(c.srcc) and set(c.srcc) != vw: n = max(n, big - 2)
            if vw & c.w and set(c.srcc) != vw: n = max(n, big)
        elif (c.valu or c.vmem or c.ds) and vw & (c.r | c.w): n = max(n, big)
        if c.valu and set(p.srcc) & c.w: n = max(n, {4: 3, 8: 7}[passes])
    if p.stdata and set(p.stdata) & c.w: n = max(n, 2)
    if p.salu and ('s', 'm0') in p.w and (' lds' in ' ' + c.mods or c.op.startswith('s_movrel')): n = max(n, 1)
    return n
class Asm:
    def __init__(self):
        self.lines = []
        self.hist = []
        self.vm = []
        self.maxvm = 0
        self.nops = 0
    def raw(self, text):
        self.lines.append(text)
    def label(self, name, keep_hist=True):
        self.lines.append(name + ':')
    def __call__(self, text, tag=None):
        c = Ins(text)
        dist = 0; req = 0
        for p in reversed(self.hist):
            k = need(p, c) - dist
            if k > req: req = k
            dist += p.ws
            if dist > 24: break
        while req > 0:
            k = min(req, 16)
            self.lines.append(f'  s_nop {k-1}')
            self.hist.append(Ins(f's_nop {k-1}')); self.nops += 1
            req -= k
        self.lines.append('  ' + text)
        self.hist.append(c)
        if len(self.hist) > 64: self.hist = self.hist[-64:]
        if c.vmem and not c.op.startswith(('buffer_inv', 'buffer_wbl2')):
            self.vm.append(tag)
            self.maxvm = max(self.maxvm, len(self.vm))
    def waitvm(self, tag, extra=''):
        idx = [i for i, t in enumerate(self.vm) if t == tag]
        assert idx, f'tag {tag} not outstanding'
        n = len(self.vm) - 1 - idx[-1]
        assert n <= 63, n
        self(f's_waitcnt vmcnt({n}){extra}')
        self.vm = self.vm[idx[-1] + 1:]
        return n
    def waitvm_n(self, n):
        self(f's_waitcnt vmcnt({n})')
        if len(self.vm) > n: self.vm = self.vm[len(self.vm) - n:]
    def cap(self, lim=62):
        if len(self.vm) > lim: self.waitvm_n(lim)
    def text(self):
        return '\n'.join(self.lines) + '\n'
```

```python
import sys, math, struct
from asmlib import Asm
KN = 'concat_heads__mha_block_cached__mha_block_cached__decode'
def f2u(x): return struct.unpack('<I', struct.pack('<f', x))[0]
HEADER = open('cdna_kernels/' + KN + '.s.ref').read().split('; Override launch')[0] if False else ''

def kd(A, name, nv, ns, acc):
    A.raw('.section .rodata,"a"')
    A.raw('.p2align 6')
    A.raw(f'.amdhsa_kernel {name}')
    A.raw(f'  .amdhsa_next_free_vgpr {nv}')
    A.raw(f'  .amdhsa_next_free_sgpr {ns}')
    A.raw(f'  .amdhsa_accum_offset {acc}')
    A.raw('  .amdhsa_group_segment_fixed_size 0')
    A.raw('  .amdhsa_kernarg_size 104')
    A.raw('  .amdhsa_user_sgpr_count 2')
    A.raw('  .amdhsa_user_sgpr_kernarg_segment_ptr 1')
    A.raw('  .amdhsa_system_sgpr_workgroup_id_x 1')
    A.raw('.end_amdhsa_kernel')

def gen(NS=4, kvpol='nt', wpol='', WOB=4, stamps=0, skiprescale=1):
    A = Asm()
    main = 'attn_main_kernel'; red = 'attn_reduce_kernel'
    LDS = 16384 + 256 + 512 + 4096
    ML = 16384; OB = ML + 256; QP = OB + 512
    A.raw(f'; @launch kernel={main} grid=(256,1,1) block=(256,1,1) lds={LDS}')
    A.raw(f'; @launch kernel={red} grid=(256,1,1) block=(64,1,1) lds=0')
    if stamps: A.raw(f'; STAMPS 1024 4 {0x4000000}')
    A.raw('.amdgcn_target "amdgcn-amd-amdhsa--gfx950"')
    A.raw('.text')
    A.raw(f'.globl {main}')
    A.raw('.p2align 8')
    A.raw(f'.type {main},@function')
    A.label(main)
    vKV, vWQ, vWO = 1, 2, 3
    qA, qB = 4, 8
    O = 12; M = 20; Lr = 21
    a = [22, 23, 24, 25]; t0, t1, u, mx = 26, 27, 28, 29
    alpha, nmc, p, plo, phi = 30, 31, 32, 33, 34
    tmp = 35
    SEL = 40; FR = [48, 52]; ACC = [56, 60]
    RING = 64
    XD = RING + 32 * NS
    assert XD + 32 <= 256
    K_ = lambda s, j: RING + 32 * s + 4 * j
    V_ = lambda s, j: RING + 32 * s + 16 + 4 * j
    sK, sV, sW, sX, sP, sO = 's[4:7]', 's[8:11]', 's[12:15]', 's[16:19]', 's[20:23]', 's[24:27]'
    sw, sh, sbp, sbr, soff, sc, sit, st = 's28', 's29', 's30', 's31', 's32', 's33', 's34', 's35'
    swoff = 's36'
    A('s_cmp_ge_u32 s2, 256')
    A('s_cbranch_scc1 L_main_end')
    if stamps: A('s_memrealtime s[60:61]')
    A('s_load_dwordx8 s[40:47], s[0:1], 0')
    A('s_load_dwordx4 s[48:51], s[0:1], 32')
    A('s_load_dwordx8 s[52:59], s[0:1], 48')
    A('s_load_dwordx2 s[20:21], s[0:1], 96')
    A('v_lshrrev_b32 v4, 6, v0')
    A('v_and_b32 v5, 63, v0')
    A(f'v_readfirstlane_b32 {sw}, v4')
    A('v_lshrrev_b32 v6, 4, v5')
    A('v_and_b32 v7, 15, v5')
    A(f'v_lshlrev_b32 v{vKV}, 4, v5')
    A('v_lshlrev_b32 v8, 4, v7')
    A(f'v_lshl_add_u32 v{vWQ}, v6, 19, v8')
    A(f'v_lshl_add_u32 v{vWO}, v6, 16, v8')
    A('s_lshr_b32 s37, s2, 3')
    A(f's_and_b32 {sbp}, s37, 3')
    A('s_lshr_b32 s37, s37, 2')
    A('s_lshl_b32 s37, s37, 3')
    A('s_and_b32 s38, s2, 7')
    A('s_or_b32 s37, s37, s38')
    A(f's_lshr_b32 {sbr}, s37, 5')
    A(f's_and_b32 {sh}, s37, 31')
    A('v_lshrrev_b32 v9, 3, v7')
    A('v_lshlrev_b32 v9, 11, v9')
    A('v_lshl_add_u32 v9, v6, 7, v9')
    A('s_waitcnt lgkmcnt(0)')
    A(f's_cmp_eq_u32 {sbr}, 0')
    A('s_cselect_b32 s16, s40, s50'); A('s_cselect_b32 s17, s41, s51')
    A('s_cselect_b32 s4, s42, s52'); A('s_cselect_b32 s5, s43, s53')
    A('s_cselect_b32 s8, s44, s54'); A('s_cselect_b32 s9, s45, s55')
    A('s_cselect_b32 s12, s46, s56'); A('s_cselect_b32 s13, s47, s57')
    A('s_cselect_b32 s24, s48, s58'); A('s_cselect_b32 s25, s49, s59')
    for r, n in ((6, 0x10000000), (10, 0x10000000), (14, 0x800000), (18, 16384), (22, 0x200000), (26, 0x800000)):
        A(f's_mov_b32 s{r}, {hex(n)}')
        A(f's_mov_b32 s{r+1}, 0x20000')
    A(f's_lshl_b32 s37, {sbp}, 12')
    A(f's_lshl_b32 s38, {sw}, 9')
    A('s_add_u32 s37, s37, s38')
    for k in range(8):
        A(f'buffer_load_dwordx4 v[{XD+4*k}:{XD+4*k+3}], v9, {sX}, s37 offen offset:{16*k}', tag='x')
    A(f's_lshl_b32 {swoff}, {sw}, 21')
    A(f's_lshl_b32 s38, {sh}, 8')
    A(f's_add_u32 {swoff}, {swoff}, s38')
    pending = []
    def wq_load(jj):
        def f():
            A(f'buffer_load_dwordx4 a[{4*jj}:{4*jj+3}], v{vWQ}, {sW}, {swoff} offen {wpol}', tag=('wq', jj))
            A(f's_add_u32 {swoff}, {swoff}, 8192')
        return f
    def kv_loads(slot, which, n):
        srd = sK if which == 'K' else sV
        for j in range(4):
            r = K_(slot, j) if which == 'K' else V_(slot, j)
            A.cap()
            A(f'buffer_load_dwordx4 v[{r}:{r+3}], v{vKV}, {srd}, {soff} offen offset:{1024*j} {kvpol}', tag=(which, n))
        if which == 'V': A(f's_add_u32 {soff}, {soff}, 16384')
    for jj in range(55): wq_load(jj)()
    A(f's_lshl_b32 {soff}, {sbp}, 26')
    A(f's_lshl_b32 s38, {sh}, 20')
    A(f's_add_u32 {soff}, {soff}, s38')
    A(f's_lshl_b32 s38, {sw}, 12')
    A(f's_add_u32 {soff}, {soff}, s38')
    A(f's_mov_b32 {sc}, {hex(f2u(math.log2(math.e) / math.sqrt(128.0)))}')
    A('v_and_b32 v10, 7, v7')
    A('v_lshrrev_b32 v11, 1, v10')
    A('v_and_b32 v10, 1, v10')
    A('v_cmp_eq_u32 vcc, 1, v10')
    A('v_mov_b32 v12, 0x0c0c0100'); A('v_mov_b32 v13, 0x01000c0c')
    A('v_cndmask_b32 v14, v12, v13, vcc')
    A('v_mov_b32 v12, 0x0c0c0302'); A('v_mov_b32 v13, 0x03020c0c')
    A('v_cndmask_b32 v15, v12, v13, vcc')
    A('v_mov_b32 v12, 0x0c0c0c0c')
    for r in range(4):
        A(f'v_cmp_eq_u32 vcc, {r}, v11')
        A(f'v_cndmask_b32 v{SEL+2*r}, v12, v14, vcc')
        A(f'v_cndmask_b32 v{SEL+2*r+1}, v12, v15, vcc')
    A(f's_lshl_b32 s38, {sw}, 11')
    A('v_lshlrev_b32 v36, 9, v6')
    A('v_lshl_add_u32 v36, v7, 5, v36')
    A('v_add_u32 v36, s38, v36')
    A(f's_lshl_b32 s38, {sw}, 4')
    A(f's_add_u32 s38, s38, {ML}')
    A('v_lshl_add_u32 v37, v6, 2, s38')
    rest = [wq_load(jj) for jj in range(55, 64)]
    for n in range(NS):
        for which in 'KV':
            for j in range(4):
                def f(n=n, which=which, j=j):
                    srd = sK if which == 'K' else sV
                    r = K_(n, j) if which == 'K' else V_(n, j)
                    A(f'buffer_load_dwordx4 v[{r}:{r+3}], v{vKV}, {srd}, {soff} offen offset:{1024*j} {kvpol}', tag=(which, n))
                    if which == 'V' and j == 3: A(f's_add_u32 {soff}, {soff}, 16384')
                rest.append(f)
    A.waitvm('x')
    for jj in range(64):
        fr = FR[jj & 1]
        for r in range(4):
            A(f'v_perm_b32 v{fr+r}, v{XD+(jj>>1)}, v{XD+(jj>>1)}, v{SEL+2*r+(jj&1)}')
        A.waitvm(('wq', jj))
        c = '0' if jj == 0 else f'v[{ACC[0]}:{ACC[0]+3}]'
        A(f'v_mfma_f32_16x16x32_bf16 v[{ACC[0]}:{ACC[0]+3}], v[{fr}:{fr+3}], a[{4*jj}:{4*jj+3}], {c}')
        while rest and len(A.vm) < 63:
            rest.pop(0)()
    assert not rest
    A('v_lshrrev_b32 v10, 1, v6')
    A('v_and_b32 v11, 1, v6')
    A('v_lshlrev_b32 v10, 9, v10')
    A('v_lshl_add_u32 v10, v11, 4, v10')
    A('v_lshl_add_u32 v10, v7, 5, v10')
    A(f's_lshl_b32 s38, {sw}, 10')
    A(f's_add_u32 s38, s38, {QP}')
    A('v_add_u32 v10, s38, v10')
    A(f'ds_write_b128 v10, v[{ACC[0]}:{ACC[0]+3}]')
    A('v_lshlrev_b32 v11, 5, v7')
    A('s_waitcnt lgkmcnt(0)')
    A('s_barrier')
    T = XD
    for b in range(2):
        for w in range(4):
            for hlf in range(2):
                r = T + 8 * w + 4 * hlf
                A(f'ds_read_b128 v[{r}:{r+3}], v11 offset:{QP + w*1024 + b*512 + 16*hlf}')
        A('s_waitcnt lgkmcnt(0)')
        for e in range(8):
            A(f'v_add_f32 v{T+e}, v{T+e}, v{T+8+e}')
            A(f'v_add_f32 v{T+16+e}, v{T+16+e}, v{T+24+e}')
        for e in range(8):
            A(f'v_add_f32 v{T+e}, v{T+e}, v{T+16+e}')
        q = qA if b == 0 else qB
        for r in range(4):
            A(f'v_cvt_pk_bf16_f32 v{q+r}, v{T+2*r}, v{T+2*r+1}')
    def reset():
        for e in range(8): A(f'v_mov_b32 v{O+e}, 0')
        A(f'v_mov_b32 v{M}, 0xff800000')
        A(f'v_mov_b32 v{Lr}, 0')
    reset()
    if stamps: A('s_memrealtime s[62:63]')
    A(f's_lshl_b32 {swoff}, {sh}, 18')
    A(f's_lshl_b32 s38, {sw}, 9')
    A(f's_add_u32 {swoff}, {swoff}, s38')
    wo_list = [(rg, ch) for rg in range(32) for ch in range(2)]
    def wo_load():
        rg, ch = wo_list.pop(0)
        i = 2 * rg + ch
        A.cap()
        A(f'buffer_load_dwordx4 a[{4*i}:{4*i+3}], v{vWO}, {sO}, {swoff} offen offset:{(rg&1)*2048 + 256*ch} {wpol}', tag='wo')
        if ch == 1 and (rg & 1): A(f's_add_u32 {swoff}, {swoff}, 4096')
    BANK = [0, 2, 1, 3]
    dm = 'row_mask:0xf bank_mask:0xf'
    nlab = [0]
    def block(slot, n, nwo, fixed=None):
        if fixed is None: A.waitvm(('K', n))
        else: A.waitvm_n(fixed)
        for r in range(4):
            for j in range(4):
                c = '0' if r == 0 else f'v{a[j]}'
                A(f'v_dot2_f32_bf16 v{a[j]}, v{K_(slot,j)+r}, v{qA+r}, {c}')
        kv_loads(slot, 'K', n + NS)
        A(f'v_add_f32_dpp v{t0}, v{a[0]}, v{a[0]} row_ror:8 row_mask:0xf bank_mask:0x3')
        A(f'v_add_f32_dpp v{t1}, v{a[2]}, v{a[2]} row_ror:8 row_mask:0xf bank_mask:0x3')
        A(f'v_add_f32_dpp v{t0}, v{a[1]}, v{a[1]} row_ror:8 row_mask:0xf bank_mask:0xc')
        A(f'v_add_f32_dpp v{t1}, v{a[3]}, v{a[3]} row_ror:8 row_mask:0xf bank_mask:0xc')
        A(f'v_add_f32_dpp v{u}, v{t0}, v{t0} row_half_mirror row_mask:0xf bank_mask:0x5')
        A(f'v_add_f32_dpp v{u}, v{t1}, v{t1} row_half_mirror row_mask:0xf bank_mask:0xa')
        A(f'v_add_f32_dpp v{u}, v{u}, v{u} quad_perm:[1,0,3,2] {dm}')
        A(f'v_add_f32_dpp v{u}, v{u}, v{u} quad_perm:[2,3,0,1] {dm}')
        A(f'v_max_f32_dpp v{mx}, v{u}, v{u} row_ror:4 {dm}')
        A(f'v_max_f32_dpp v{mx}, v{mx}, v{mx} row_ror:8 {dm}')
        A(f'v_max_f32 v{mx}, v{mx}, v{M}')
        A(f'v_mul_f32 v{nmc}, {sc}, v{mx}')
        A(f'v_fma_f32 v{p}, v{u}, {sc}, -v{nmc}')
        A(f'v_fma_f32 v{alpha}, v{M}, {sc}, -v{nmc}')
        A(f'v_exp_f32 v{p}, v{p}')
        A(f'v_exp_f32 v{alpha}, v{alpha}')
        A(f'v_mov_b32 v{M}, v{mx}')
        A(f'v_cvt_pk_bf16_f32 v{plo}, v{p}, 0')
        A(f'v_cvt_pk_bf16_f32 v{phi}, 0, v{p}')
        A(f'v_fma_f32 v{Lr}, v{Lr}, v{alpha}, v{p}')
        for e in range(0, 8, 2):
            A(f'v_pk_mul_f32 v[{O+e}:{O+e+1}], v[{O+e}:{O+e+1}], v[{alpha}:{alpha+1}] op_sel_hi:[1,0]')
        if fixed is None: A.waitvm(('V', n))
        else: A.waitvm_n(fixed)
        for j in range(4):
            for r in range(4):
                A(f'v_dot2c_f32_bf16_dpp v{O+2*r}, v{plo}, v{V_(slot,j)+r} row_newbcast:{4*BANK[j]} {dm}')
                A(f'v_dot2c_f32_bf16_dpp v{O+2*r+1}, v{phi}, v{V_(slot,j)+r} row_newbcast:{4*BANK[j]} {dm}')
        kv_loads(slot, 'V', n + NS)
        for _ in range(nwo): wo_load()
    def flush(unit):
        A(f'v_add_f32_dpp v{tmp}, v{Lr}, v{Lr} row_ror:4 {dm}')
        A(f'ds_write_b128 v36, v[{O}:{O+3}] offset:{unit*8192}')
        A(f'ds_write_b128 v36, v[{O+4}:{O+7}] offset:{unit*8192+16}')
        A(f'v_add_f32_dpp v{tmp}, v{tmp}, v{tmp} row_ror:8 {dm}')
        A(f'ds_write_b32 v37, v{M} offset:{unit*128}')
        A(f'ds_write_b32 v37, v{tmp} offset:{unit*128+64}')
    P1 = 64 // WOB
    P1 = (P1 + NS - 1) // NS * NS
    for n in range(P1):
        block(n % NS, n, min(WOB, len(wo_list)))
    assert not wo_list
    assert (128 - P1) % NS == 0 and (64 - P1) % NS == 0
    steady = 8 * (NS - 1) + 4
    A(f's_mov_b32 {sit}, {P1}')
    A.label('L_loop')
    A(f's_cmp_eq_u32 {sit}, {64 - NS}')
    A(f's_cselect_b32 s38, {(1<<25) - (1<<20)}, 0')
    A(f's_add_u32 {soff}, {soff}, s38')
    A(f's_cmp_eq_u32 {sit}, {128 - NS}')
    A(f's_cselect_b32 {soff}, 0x10000000, {soff}')
    A(f's_cmp_lg_u32 {sit}, 64')
    A('s_cbranch_scc1 L_noswitch')
    A('s_nop 2')
    flush(0)
    for r in range(4): A(f'v_mov_b32 v{qA+r}, v{qB+r}')
    A('s_waitcnt lgkmcnt(0)')
    reset()
    A.label('L_noswitch')
    for s in range(NS):
        block(s, 1000 + s, 0, fixed=steady)
    A(f's_add_u32 {sit}, {sit}, {NS}')
    A(f's_cmp_lg_u32 {sit}, 128')
    A('s_cbranch_scc1 L_loop')
    if stamps: A('s_memrealtime s[64:65]')
    A('s_nop 2')
    flush(1)
    A('v_lshrrev_b32 v4, 7, v0')
    A('v_and_b32 v5, 127, v0')
    A('v_lshlrev_b32 v8, 7, v4')
    A('v_lshlrev_b32 v9, 13, v4')
    A('v_lshl_add_u32 v9, v5, 2, v9')
    A('v_lshlrev_b32 v10, 8, v4')
    A('v_lshl_add_u32 v10, v5, 1, v10')
    A('s_waitcnt vmcnt(0) lgkmcnt(0)')
    A.vm = []
    A('s_barrier')
    T = RING
    for k in range(8):
        A(f'ds_read_b128 v[{T+4*k}:{T+4*k+3}], v8 offset:{ML+16*k}')
    for k in range(16):
        A(f'ds_read_b32 v{T+32+k}, v9 offset:{512*k}')
    A('s_waitcnt lgkmcnt(15)')
    A(f'v_max3_f32 v{mx}, v{T}, v{T+1}, v{T+2}')
    for k in range(3, 15, 2):
        A(f'v_max3_f32 v{mx}, v{mx}, v{T+k}, v{T+k+1}')
    A(f'v_max_f32 v{mx}, v{mx}, v{T+15}')
    A(f'v_mul_f32 v{nmc}, {sc}, v{mx}')
    for k in range(16):
        A(f'v_fma_f32 v{T+k}, v{T+k}, {sc}, -v{nmc}')
    for k in range(16):
        A(f'v_exp_f32 v{T+k}, v{T+k}')
    A(f'v_mul_f32 v{t0}, v{T}, v{T+16}')
    for k in range(1, 16):
        A(f'v_fmac_f32 v{t0}, v{T+k}, v{T+16+k}')
    A(f'v_rcp_f32 v{t0}, v{t0}')
    A('s_waitcnt lgkmcnt(0)')
    A(f'v_mul_f32 v{t1}, v{T}, v{T+32}')
    for k in range(1, 16):
        A(f'v_fmac_f32 v{t1}, v{T+k}, v{T+32+k}')
    A(f'v_mul_f32 v{t1}, v{t1}, v{t0}')
    A(f'v_cvt_pk_bf16_f32 v{t1}, v{t1}, v{t1}')
    A(f'ds_write_b16 v10, v{t1} offset:{OB}')
    A('v_and_b32 v5, 63, v0')
    A('v_lshrrev_b32 v6, 4, v5')
    A('v_and_b32 v7, 15, v5')
    A('v_lshrrev_b32 v8, 3, v7')
    A('v_lshlrev_b32 v8, 8, v8')
    A('v_lshl_add_u32 v8, v6, 6, v8')
    A('v_lshrrev_b32 v9, 1, v6')
    A('v_and_b32 v11, 1, v6')
    A('v_lshlrev_b32 v9, 17, v9')
    A('v_lshl_add_u32 v9, v11, 4, v9')
    A('v_lshl_add_u32 v9, v7, 5, v9')
    A(f's_lshl_b32 s37, {sbr}, 20')
    A(f's_lshl_b32 s38, {sbp}, 18')
    A('s_add_u32 s37, s37, s38')
    A(f's_lshl_b32 s38, {sh}, 12')
    A('s_add_u32 s37, s37, s38')
    A(f's_lshl_b32 s38, {sw}, 10')
    A('s_add_u32 s37, s37, s38')
    A('s_waitcnt lgkmcnt(0)')
    A('s_barrier')
    for k in range(4):
        A(f'ds_read_b128 v[{T+4*k}:{T+4*k+3}], v8 offset:{OB+16*k}')
    for rg in range(32):
        if rg % 8 == 0: A(f's_waitcnt lgkmcnt({3 - rg//8})')
        fr = FR[rg & 1]
        for r in range(4):
            A(f'v_perm_b32 v{fr+r}, v{T+(rg>>1)}, v{T+(rg>>1)}, v{SEL+2*r+(rg&1)}')
        for ch in range(2):
            i = 2 * rg + ch
            c = '0' if rg == 0 else f'v[{ACC[ch]}:{ACC[ch]+3}]'
            A(f'v_mfma_f32_16x16x32_bf16 v[{ACC[ch]}:{ACC[ch]+3}], v[{fr}:{fr+3}], a[{4*i}:{4*i+3}], {c}')
    for ch in range(2):
        A(f'buffer_store_dwordx4 v[{ACC[ch]}:{ACC[ch]+3}], v9, {sP}, s37 offen offset:{512*ch}')
    if stamps:
        A('s_memrealtime s[66:67]')
        A('s_waitcnt lgkmcnt(0)')
        A('s_lshl_b32 s37, s2, 2')
        A(f's_add_u32 s37, s37, {sw}')
        A('s_lshl_b32 s37, s37, 5')
        A('s_add_u32 s37, s37, 0x4000000')
        A('v_mov_b32 v4, s37')
        for k in range(8): A(f'v_mov_b32 v{8+k}, s{60+k}')
        A('global_store_dwordx4 v4, v[8:11], s[20:21]')
        A('global_store_dwordx4 v4, v[12:15], s[20:21] offset:16')
    A.label('L_main_end')
    A('s_endpgm')
    A.hist = []; A.vm = []
    A.raw(f'.globl {red}')
    A.raw('.p2align 8')
    A.raw(f'.type {red},@function')
    A.label(red)
    A('s_cmp_ge_u32 s2, 256')
    A('s_cbranch_scc1 L_red_end')
    A('s_load_dwordx2 s[4:5], s[0:1], 96')
    A('s_load_dwordx2 s[8:9], s[0:1], 80')
    A('v_lshrrev_b32 v1, 4, v0')
    A('v_and_b32 v2, 15, v0')
    A('v_lshlrev_b32 v1, 15, v1')
    A('v_lshl_add_u32 v1, v2, 4, v1')
    A('s_lshr_b32 s12, s2, 4')
    A('s_and_b32 s13, s2, 15')
    A('s_lshl_b32 s14, s12, 17')
    A('s_lshl_b32 s15, s13, 8')
    A('s_add_u32 s14, s14, s15')
    A('s_mov_b32 s6, 0x200000'); A('s_mov_b32 s7, 0x20000')
    A('s_mov_b32 s10, 32768'); A('s_mov_b32 s11, 0x20000')
    A('s_waitcnt lgkmcnt(0)')
    for k in range(8):
        A(f'buffer_load_dwordx4 v[{4+4*k}:{7+4*k}], v1, s[4:7], s14 offen', tag=k)
        A('s_add_u32 s14, s14, 4096')
    A('s_and_b32 s16, s12, 7')
    A('s_lshl_b32 s16, s16, 12')
    A('s_lshr_b32 s17, s12, 3')
    A('s_lshl_b32 s17, s17, 11')
    A('s_add_u32 s16, s16, s17')
    A('s_lshl_b32 s17, s13, 7')
    A('s_add_u32 s16, s16, s17')
    A('v_lshlrev_b32 v2, 3, v2')
    for k in range(1, 8):
        if k == 1: A.waitvm(0)
        A.waitvm(k)
        for e in range(4): A(f'v_add_f32 v{4+e}, v{4+e}, v{4+4*k+e}')
    for e in range(4): A(f'v_mov_b32 v{8+e}, v{4+e}')
    for e in range(4): A(f'v_permlane32_swap_b32 v{4+e}, v{8+e}')
    for e in range(4): A(f'v_add_f32 v{4+e}, v{4+e}, v{8+e}')
    for e in range(4): A(f'v_mov_b32 v{8+e}, v{4+e}')
    for e in range(4): A(f'v_permlane16_swap_b32 v{4+e}, v{8+e}')
    for e in range(4): A(f'v_add_f32 v{4+e}, v{4+e}, v{8+e}')
    A('v_cvt_pk_bf16_f32 v4, v4, v5')
    A('v_cvt_pk_bf16_f32 v5, v6, v7')
    A('v_cmp_gt_u32 vcc, 16, v0')
    A('s_and_saveexec_b64 s[18:19], vcc')
    A('buffer_store_dwordx2 v[4:5], v2, s[8:11], s16 offen')
    A.label('L_red_end')
    A('s_endpgm')
    kd(A, main, 512, 96, 256)
    kd(A, red, 40, 32, 40)
    return A.text()

if __name__ == '__main__':
    for spec in sys.argv[1:]:
        kw = {}
        for kv in spec.split(','):
            if not kv or kv == 'x': continue
            k, v = kv.split('=')
            kw[k] = int(v) if v.lstrip('-').isdigit() else v.replace('+', ' ').replace('none', '')
        name = 'k1_' + spec.replace('=', '').replace(',', '_').replace('+', '') + '.s'
        open(name, 'w').write(gen(**kw))
        print(name)
```

```python
import re
TRANS = ('v_exp_f32', 'v_log_f32', 'v_rcp_f32', 'v_rsq_f32', 'v_sqrt_f32', 'v_sin_f32', 'v_cos_f32')
def regs_of(tok):
    tok = tok.strip().lstrip('-')
    if tok.startswith('abs(') or tok.startswith('|'):
        tok = tok.replace('abs(', '').replace(')', '').replace('|', '')
    m = re.fullmatch(r'([vas])(\d+)', tok)
    if m: return [(m.group(1), int(m.group(2)))]
    m = re.fullmatch(r'([vas])\[(\d+):(\d+)\]', tok)
    if m: return [(m.group(1), i) for i in range(int(m.group(2)), int(m.group(3)) + 1)]
    if tok == 'vcc': return [('s', 'vcc')]
    if tok == 'exec': return [('s', 'exec')]
    if tok == 'm0': return [('s', 'm0')]
    return []
class Ins:
    def __init__(self, text):
        self.text = text
        t = text.split(';')[0].strip()
        parts = t.split(None, 1)
        self.op = parts[0]
        rest = parts[1] if len(parts) > 1 else ''
        ops = re.split(r',\s*(?![^\[]*\])', rest) if rest else []
        self.mods = ''
        if ops:
            last = ops[-1].strip().split(None, 1)
            ops[-1] = last[0] if last else ''
            self.mods = last[1] if len(last) > 1 else ''
        self.ops = [o.strip() for o in ops]
        op = self.op
        self.valu = op.startswith('v_') and not op.startswith('v_mfma')
        self.mfma = op.startswith('v_mfma')
        self.vmem = op.startswith(('buffer_', 'global_'))
        self.ds = op.startswith('ds_')
        self.salu = op.startswith('s_')
        self.dpp = '_dpp' in op
        self.dot = op.startswith('v_dot')
        self.trans = op.replace('_e32', '').replace('_e64', '') in TRANS
        R = [regs_of(o) for o in self.ops]
        w, r = [], []
        self.srcc = []
        self.srcab = []
        self.stdata = []
        if self.mfma:
            w = R[0]; r = R[1] + R[2] + R[3]; self.srcc = R[3]; self.srcab = R[1] + R[2]
        elif self.valu:
            if op.startswith('v_cmp'):
                w = R[0]; r = sum(R[1:], [])
            elif op.startswith(('v_permlane32_swap', 'v_permlane16_swap', 'v_swap')):
                w = R[0] + R[1]; r = R[0] + R[1]
            elif op.startswith(('v_add_co', 'v_sub_co', 'v_addc_co', 'v_subb_co')):
                w = R[0] + R[1]; r = sum(R[2:], [])
            else:
                w = R[0]; r = sum(R[1:], [])
                if op.startswith(('v_fmac', 'v_dot2c', 'v_writelane')) or self.dpp:
                    r = r + R[0]
                if op.startswith('v_dot2c'): self.srcc = R[0]; self.srcab = R[1] + R[2]
                elif op.startswith('v_dot2'): self.srcc = R[3]; self.srcab = R[1] + R[2]
                if op.startswith('v_cndmask') and len(R) == 3: r = r + [('s', 'vcc')]
        elif self.vmem:
            if 'load' in op and ' lds' not in (' ' + self.mods):
                w = R[0]; r = sum(R[1:], [])
            elif 'atomic' in op and 'sc0' in self.mods:
                if op.startswith('global'): w = R[0]; r = sum(R[1:], [])
                else: w = R[0]; r = sum(R, [])
            else:
                r = sum(R, [])
                if 'store' in op and ('x4' in op or 'x3' in op):
                    self.stdata = R[0] if op.startswith('buffer') else R[1]
        elif self.ds:
            if 'read' in op or 'rtn' in op or 'permute' in op or 'swizzle' in op:
                w = R[0]; r = sum(R[1:], [])
            else:
                r = sum(R, [])
        elif self.salu:
            if R and not op.startswith(('s_cmp', 's_waitcnt', 's_nop', 's_cbranch', 's_branch', 's_barrier', 's_bitcmp', 's_setprio', 's_sleep', 's_endpgm')):
                w = R[0]; r = sum(R[1:], [])
            else:
                r = sum(R, [])
        self.w = set(w); self.r = set(r)
        self.ws = 1
        if op == 's_nop': self.ws = int(self.ops[0], 0) + 1
def need(p, c):
    n = 0
    vw = {x for x in p.w if x[0] in 'va'}
    sw = {x for x in p.w if x[0] == 's'}
    if p.valu:
        if c.dpp and vw & c.r: n = max(n, 2)
        if p.trans and c.valu and not c.trans and vw & c.r: n = max(n, 1)
        if c.mfma and vw & c.r: n = max(n, 2)
        if c.op.startswith(('v_readlane', 'v_readfirstlane')) and vw & c.r: n = max(n, 1)
        if c.op.startswith('v_permlane') and vw & c.r: n = max(n, 2)
        if sw:
            if c.vmem and sw & c.r: n = max(n, 5)
            if c.valu and sw & c.r: n = max(n, 4 if c.op.startswith(('v_readlane', 'v_writelane')) else 2)
            if c.salu and sw & c.r: n = max(n, 2)
            if c.op.startswith('s_cbranch_vcc') and ('s', 'vcc') in sw: n = max(n, 2)
        if p.dot and (c.valu or c.mfma or c.vmem or c.ds):
            base = lambda o: o.replace('_dpp', '').replace('_e32', '').replace('_e64', '')
            if c.dot and base(c.op) == base(p.op):
                if vw & set(c.srcab): n = max(n, 3)
            elif vw & (c.r | c.w): n = max(n, 3)
    if p.mfma:
        passes = 8 if '32x32' in p.op else 4
        big = {4: 8, 8: 12}[passes]
        if c.mfma:
            if vw & set(c.srcab): n = max(n, big)
            if vw & set(c.srcc) and set(c.srcc) != vw: n = max(n, big - 2)
            if vw & c.w and set(c.srcc) != vw: n = max(n, big)
        elif (c.valu or c.vmem or c.ds) and vw & (c.r | c.w): n = max(n, big)
        if c.valu and set(p.srcc) & c.w: n = max(n, {4: 3, 8: 7}[passes])
    if p.stdata and set(p.stdata) & c.w: n = max(n, 2)
    if p.salu and ('s', 'm0') in p.w and (' lds' in ' ' + c.mods or c.op.startswith('s_movrel')): n = max(n, 1)
    return n
class Asm:
    def __init__(self):
        self.lines = []
        self.hist = []
        self.vm = []
        self.maxvm = 0
        self.issued = set()
        self.nops = 0
    def raw(self, text):
        self.lines.append(text)
    def label(self, name, keep_hist=True):
        self.lines.append(name + ':')
    def __call__(self, text, tag=None):
        c = Ins(text)
        dist = 0; req = 0
        for p in reversed(self.hist):
            k = need(p, c) - dist
            if k > req: req = k
            dist += p.ws
            if dist > 24: break
        while req > 0:
            k = min(req, 16)
            self.lines.append(f'  s_nop {k-1}')
            self.hist.append(Ins(f's_nop {k-1}')); self.nops += 1
            req -= k
        self.lines.append('  ' + text)
        self.hist.append(c)
        if len(self.hist) > 64: self.hist = self.hist[-64:]
        if c.vmem and not c.op.startswith(('buffer_inv', 'buffer_wbl2')):
            self.vm.append(tag); self.issued.add(tag)
            self.maxvm = max(self.maxvm, len(self.vm))
    def waitvm(self, tag, extra=''):
        idx = [i for i, t in enumerate(self.vm) if t == tag]
        if not idx:
            assert tag in self.issued, f'tag {tag} never issued'
            return None
        n = len(self.vm) - 1 - idx[-1]
        assert n <= 63, n
        self(f's_waitcnt vmcnt({n}){extra}')
        self.vm = self.vm[idx[-1] + 1:]
        return n
    def waitvm_n(self, n):
        self(f's_waitcnt vmcnt({n})')
        if len(self.vm) > n: self.vm = self.vm[len(self.vm) - n:]
    def cap(self, lim=62):
        if len(self.vm) > lim: self.waitvm_n(lim)
    def text(self):
        return '\n'.join(self.lines) + '\n'
```

```python
import sys, math, struct
from asmlib import Asm
KN = 'concat_heads__mha_block_cached__mha_block_cached__decode_kernel'
def f2u(x): return struct.unpack('<I', struct.pack('<f', x))[0]

def gen(NS=4, kvpol='nt', wpol='', WOB=4, stamps=0, hmap=0, rot='g', R1=2, woearly=0, slp=2, TH=31, gs1=32, gs2=8, nordy=0, noclr=0, nored=0, rdymode=1, sig='s', chk='s', dbgst=0, header=''):
    A = Asm()
    ST = 0; ML = 4096; OB = ML + 64; QP = OB + 512
    LDS = QP + 4096
    A.raw(header + f'; @launch grid=(256,1,1) block=(256,1,1) lds={LDS}')
    if stamps: A.raw(f'; STAMPS 1024 4 {0x4000000}')
    A.raw('.amdgcn_target "amdgcn-amd-amdhsa--gfx950"')
    A.raw('.text')
    A.raw(f'.globl {KN}')
    A.raw('.p2align 8')
    A.raw(f'.type {KN},@function')
    A.label(KN)
    vKV, vWQ, vWO = 1, 2, 3
    qA, qB = 4, 8
    O = 12; M = 20; Lr = 21
    a = [22, 23, 24, 25]; t0, t1, u, mx = 26, 27, 28, 29
    alpha, nmc, p, plo, phi = 30, 31, 32, 33, 34
    tmp = 35; vST, vML = 36, 37
    SEL = 40; FR = [48, 52]; ACC = [56, 60]
    RING = 64
    XD = RING + 32 * NS
    assert XD + 32 <= 256
    K_ = lambda s, j: RING + 32 * s + 4 * j
    V_ = lambda s, j: RING + 32 * s + 16 + 4 * j
    sK, sV, sW, sX, sP, sO, sOut = 's[4:7]', 's[8:11]', 's[12:15]', 's[16:19]', 's[20:23]', 's[24:27]', 's[80:83]'
    sw, sh, sbp, sbr, soff, sc, sit = 's28', 's29', 's30', 's31', 's32', 's33', 's34'
    swoff, spos, sub, sgrp, srdy = 's36', 's68', 's69', 's78', 's79'
    sdbg = 's[84:85]'
    dm = 'row_mask:0xf bank_mask:0xf'
    A('s_cmp_ge_u32 s2, 256')
    A('s_cbranch_scc1 L_end')
    A('s_load_dwordx8 s[40:47], s[0:1], 0')
    A('s_load_dwordx4 s[48:51], s[0:1], 32')
    A('s_load_dwordx8 s[52:59], s[0:1], 48')
    A('s_load_dwordx2 s[20:21], s[0:1], 96')
    A('s_load_dwordx2 s[80:81], s[0:1], 80')
    A('s_load_dwordx2 s[84:85], s[0:1], 88')
    if stamps: A('s_memrealtime s[60:61]')
    A('v_lshrrev_b32 v4, 6, v0')
    A('v_and_b32 v5, 63, v0')
    A(f'v_readfirstlane_b32 {sw}, v4')
    A('v_lshrrev_b32 v6, 4, v5')
    A('v_and_b32 v7, 15, v5')
    A(f'v_lshlrev_b32 v{vKV}, 4, v5')
    A('v_lshlrev_b32 v8, 4, v7')
    A(f'v_lshl_add_u32 v{vWQ}, v6, 19, v8')
    A(f'v_lshl_add_u32 v{vWO}, v6, 16, v8')
    A('s_lshr_b32 s37, s2, 3')
    A(f's_and_b32 {sbp}, s37, 3')
    A('s_lshr_b32 s37, s37, 2')
    A('s_and_b32 s38, s2, 7')
    if hmap == 0: A('s_lshl_b32 s37, s37, 3')
    else: A('s_lshl_b32 s38, s38, 3')
    A('s_or_b32 s37, s37, s38')
    A(f's_lshr_b32 {sbr}, s37, 5')
    A(f's_and_b32 {sh}, s37, 31')
    A('v_lshrrev_b32 v9, 3, v7')
    A('v_lshlrev_b32 v9, 11, v9')
    A('v_lshl_add_u32 v9, v6, 7, v9')
    for r, n in ((6, 0x10000000), (10, 0x10000000), (14, 0x800000), (18, 16384), (22, 0x210000), (26, 0x800000), (82, 32768)):
        A(f's_mov_b32 s{r}, {hex(n)}')
        A(f's_mov_b32 s{r+1}, 0x20000')
    A(f's_lshl_b32 s37, {sbp}, 12')
    A(f's_lshl_b32 s38, {sw}, 9')
    A('s_add_u32 s37, s37, s38')
    A(f's_lshl_b32 {swoff}, {sw}, 21')
    A(f's_lshl_b32 s38, {sh}, 8')
    A(f's_add_u32 s39, {swoff}, s38')
    for t in range(4):
        A(f's_add_u32 s38, {sbp}, {t}')
        A(f's_and_b32 s{74+t}, s38, 3')
        A(f's_lshl_b32 s{70+t}, s{74+t}, 17')
    A(f's_lshl_b32 {sub}, {sbp}, 26')
    A(f's_lshl_b32 s38, {sh}, 20')
    A(f's_add_u32 {sub}, {sub}, s38')
    if rot == 'g': A('s_and_b32 s38, s2, 63')
    else: A('s_mov_b32 s38, 0')
    A('s_lshl_b32 s38, s38, 14')
    A(f's_lshl_b32 {spos}, {sw}, 12')
    A(f's_add_u32 {spos}, {spos}, s38')
    A(f's_add_u32 {soff}, {spos}, {sub}')
    A(f's_cmp_eq_u32 {sbr}, 0')
    A('s_waitcnt lgkmcnt(0)')
    A('s_cselect_b32 s12, s46, s56'); A('s_cselect_b32 s13, s47, s57')
    A('s_cselect_b32 s16, s40, s50'); A('s_cselect_b32 s17, s41, s51')
    A('s_cselect_b32 s4, s42, s52'); A('s_cselect_b32 s5, s43, s53')
    A('s_cselect_b32 s8, s44, s54'); A('s_cselect_b32 s9, s45, s55')
    A('s_cselect_b32 s24, s48, s58'); A('s_cselect_b32 s25, s49, s59')
    def wq_load(jj):
        def f():
            if jj % 16 == 0: A(f's_add_u32 {swoff}, s39, s{70 + jj//16}')
            A(f'buffer_load_dwordx4 a[{4*jj}:{4*jj+3}], v{vWQ}, {sW}, {swoff} offen {wpol}', tag=('wq', jj))
            if jj % 16 != 15: A(f's_add_u32 {swoff}, {swoff}, 8192')
        return f
    def advance():
        A(f's_add_u32 {spos}, {spos}, 16384')
        A(f's_and_b32 {spos}, {spos}, 0xfffff')
        A(f's_add_u32 {soff}, {spos}, {sub}')
    def kv_load(slot, which, n, j):
        srd = sK if which == 'K' else sV
        r = K_(slot, j) if which == 'K' else V_(slot, j)
        A(f'buffer_load_dwordx4 v[{r}:{r+3}], v{vKV}, {srd}, {soff} offen offset:{1024*j} {kvpol}', tag=(which, n))
        if which == 'V' and j == 3: advance()
    for jj in range(16): wq_load(jj)()
    for t in range(4):
        A(f's_lshl_b32 s38, s{74+t}, 5')
        A('s_add_u32 s38, s38, s37')
        for k in range(2):
            A(f'buffer_load_dwordx4 v[{XD+8*t+4*k}:{XD+8*t+4*k+3}], v9, {sX}, s38 offen offset:{16*k}', tag='x')
    ring = [(lambda n=n, which=which, j=j: kv_load(n, which, n, j)) for n in range(NS) for which in 'KV' for j in range(4)]
    for _ in range(8 * R1): ring.pop(0)()
    A(f's_lshl_b32 {sgrp}, {sbr}, 2')
    A(f's_add_u32 {sgrp}, {sgrp}, {sbp}')
    A('s_mov_b32 s89, 1')
    A(f's_lshl_b32 s90, {sgrp}, 2')
    A('s_mov_b32 s91, 0x80000')
    A(f's_lshl_b32 s38, {sgrp}, 5')
    A(f's_add_u32 s38, s38, {sh}')
    A('s_lshl_b32 s86, s38, 13')
    A('v_lshlrev_b32 v10, 4, v0')
    for k in range(4): A(f'v_mov_b32 v{12+k}, -1')
    if not noclr:
        A(f'buffer_store_dwordx4 v[12:15], v10, {sP}, s86 offen sc1', tag='clr')
        A('s_add_u32 s38, s86, 4096')
        A(f'buffer_store_dwordx4 v[12:15], v10, {sP}, s38 offen sc1', tag='clr')
    A(f's_mul_i32 s38, {sgrp}, 4352')
    A('s_add_u32 s38, s38, 0x200000')
    A('s_add_u32 s92, s20, s38')
    A('s_addc_u32 s93, s21, 0')
    A(f's_add_u32 s37, {sh}, {sw}')
    A('s_cmp_eq_u32 s37, 0')
    A('s_cselect_b32 s38, s38, 0x40000000')
    A('v_mov_b32 v10, 0')
    A('s_mov_b64 exec, 1')
    A(f'buffer_store_dword v10, v10, {sP}, s38 offen sc1', tag='clr')
    A('s_mov_b64 exec, -1')
    A(f's_mov_b32 {sc}, {hex(f2u(math.log2(math.e) / math.sqrt(128.0)))}')
    A('v_and_b32 v10, 7, v7')
    A('v_lshrrev_b32 v11, 1, v10')
    A('v_and_b32 v10, 1, v10')
    A('v_cmp_eq_u32 vcc, 1, v10')
    A('v_mov_b32 v16, 0x0c0c0100'); A('v_mov_b32 v17, 0x01000c0c')
    A('v_cndmask_b32 v18, v16, v17, vcc')
    A('v_mov_b32 v16, 0x0c0c0302'); A('v_mov_b32 v17, 0x03020c0c')
    A('v_cndmask_b32 v19, v16, v17, vcc')
    A('v_mov_b32 v16, 0x0c0c0c0c')
    for r in range(4):
        A(f'v_cmp_eq_u32 vcc, {r}, v11')
        A(f'v_cndmask_b32 v{SEL+2*r}, v16, v18, vcc')
        A(f'v_cndmask_b32 v{SEL+2*r+1}, v16, v19, vcc')
    A(f's_lshl_b32 s38, {sw}, 9')
    A(f'v_lshlrev_b32 v{vST}, 3, v6')
    A(f'v_lshl_add_u32 v{vST}, v7, 5, v{vST}')
    A(f'v_add_u32 v{vST}, s38, v{vST}')
    A(f's_lshl_b32 s38, {sw}, 3')
    A(f's_add_u32 s38, s38, {ML}')
    A(f'v_mov_b32 v{vML}, s38')
    A(f's_lshl_b32 s38, {sh}, 18')
    A(f's_lshl_b32 s87, {sw}, 9')
    A('s_add_u32 s87, s87, s38')
    wo_list = [(rg, ch) for rg in range(32) for ch in range(2)]
    def wo_load():
        rg, ch = wo_list.pop(0)
        i = 2 * rg + ch
        if i % 16 == 0:
            A(f's_lshl_b32 s88, s{74 + i//16}, 14')
            A('s_add_u32 s88, s88, s87')
        A(f'buffer_load_dwordx4 a[{4*i}:{4*i+3}], v{vWO}, {sO}, s88 offen offset:{(rg&1)*2048 + 256*ch} {wpol}', tag='wo')
        if ch == 1 and (rg & 1): A('s_add_u32 s88, s88, 4096')
    rest = [wq_load(jj) for jj in range(16, 64)] + ring + [wo_load] * woearly
    A.waitvm('x')
    while rest and len(A.vm) < 63: rest.pop(0)()
    for jj in range(64):
        fr = FR[jj & 1]
        for r in range(4):
            A(f'v_perm_b32 v{fr+r}, v{XD+(jj>>1)}, v{XD+(jj>>1)}, v{SEL+2*r+(jj&1)}')
        A.waitvm(('wq', jj))
        c = '0' if jj == 0 else f'v[{ACC[0]}:{ACC[0]+3}]'
        A(f'v_mfma_f32_16x16x32_bf16 v[{ACC[0]}:{ACC[0]+3}], v[{fr}:{fr+3}], a[{4*jj}:{4*jj+3}], {c}')
        while rest and len(A.vm) < 63:
            if rest[0] is wo_load: assert 64 - len(wo_list) <= jj
            rest.pop(0)()
    assert not rest
    A('v_lshrrev_b32 v10, 1, v6')
    A('v_and_b32 v11, 1, v6')
    A('v_lshlrev_b32 v10, 9, v10')
    A('v_lshl_add_u32 v10, v11, 4, v10')
    A('v_lshl_add_u32 v10, v7, 5, v10')
    A(f's_lshl_b32 s38, {sw}, 10')
    A(f's_add_u32 s38, s38, {QP}')
    A('v_add_u32 v10, s38, v10')
    A('v_lshlrev_b32 v11, 5, v7')
    A(f'ds_write_b128 v10, v[{ACC[0]}:{ACC[0]+3}]')
    A('s_waitcnt lgkmcnt(0)')
    A('s_barrier')
    T = XD
    for b in range(2):
        for w in range(4):
            for hlf in range(2):
                r = T + 8 * w + 4 * hlf
                A(f'ds_read_b128 v[{r}:{r+3}], v11 offset:{QP + w*1024 + b*512 + 16*hlf}')
        A('s_waitcnt lgkmcnt(0)')
        for e in range(8):
            A(f'v_add_f32 v{T+e}, v{T+e}, v{T+8+e}')
            A(f'v_add_f32 v{T+16+e}, v{T+16+e}, v{T+24+e}')
        for e in range(8):
            A(f'v_add_f32 v{T+e}, v{T+e}, v{T+16+e}')
        q = qA if b == 0 else qB
        for r in range(4):
            A(f'v_cvt_pk_bf16_f32 v{q+r}, v{T+2*r}, v{T+2*r+1}')
    def reset():
        for e in range(8): A(f'v_mov_b32 v{O+e}, 0')
        A(f'v_mov_b32 v{M}, 0xff800000')
        A(f'v_mov_b32 v{Lr}, 0')
    reset()
    if sig.startswith('b'):
        A(f's_lshl_b32 s38, {sgrp}, 5')
        A(f'v_lshrrev_b32 v35, 2, v{vKV}')
        A('v_add_u32 v35, s38, v35')
        A(f's_add_u32 s38, s38, {sh}')
        A('v_mov_b32 v38, s38')
        A('v_mov_b32 v39, 1')
    if sig == 'b0':
        A(f's_cmp_eq_u32 {sw}, 0')
        A('s_cbranch_scc0 L_nosig0')
        A('s_mov_b64 exec, 1')
        A(f'global_store_byte v38, v39, {sdbg} sc1'); A.vm.pop()
        A('s_mov_b64 exec, -1')
        A.label('L_nosig0')
    if stamps: A('s_memrealtime s[62:63]')
    BANK = [0, 2, 1, 3]
    def block(slot, n, nwo, fixed=None, loads=True):
        if fixed is None: A.waitvm(('K', n))
        else: A.waitvm_n(fixed[0])
        for r in range(4):
            for j in range(4):
                c = '0' if r == 0 else f'v{a[j]}'
                A(f'v_dot2_f32_bf16 v{a[j]}, v{K_(slot,j)+r}, v{qA+r}, {c}')
        if loads:
            for j in range(4):
                A.cap(); kv_load(slot, 'K', n + NS, j)
        A(f'v_add_f32_dpp v{t0}, v{a[0]}, v{a[0]} row_ror:8 row_mask:0xf bank_mask:0x3')
        A(f'v_add_f32_dpp v{t1}, v{a[2]}, v{a[2]} row_ror:8 row_mask:0xf bank_mask:0x3')
        A(f'v_add_f32_dpp v{t0}, v{a[1]}, v{a[1]} row_ror:8 row_mask:0xf bank_mask:0xc')
        A(f'v_add_f32_dpp v{t1}, v{a[3]}, v{a[3]} row_ror:8 row_mask:0xf bank_mask:0xc')
        A(f'v_add_f32_dpp v{u}, v{t0}, v{t0} row_half_mirror row_mask:0xf bank_mask:0x5')
        A(f'v_add_f32_dpp v{u}, v{t1}, v{t1} row_half_mirror row_mask:0xf bank_mask:0xa')
        A(f'v_add_f32_dpp v{u}, v{u}, v{u} quad_perm:[1,0,3,2] {dm}')
        A(f'v_add_f32_dpp v{u}, v{u}, v{u} quad_perm:[2,3,0,1] {dm}')
        A(f'v_max_f32_dpp v{mx}, v{u}, v{u} row_ror:4 {dm}')
        A(f'v_max_f32_dpp v{mx}, v{mx}, v{mx} row_ror:8 {dm}')
        A(f'v_max_f32 v{mx}, v{mx}, v{M}')
        A(f'v_mul_f32 v{nmc}, {sc}, v{mx}')
        A(f'v_fma_f32 v{p}, v{u}, {sc}, -v{nmc}')
        A(f'v_fma_f32 v{alpha}, v{M}, {sc}, -v{nmc}')
        A(f'v_exp_f32 v{p}, v{p}')
        A(f'v_exp_f32 v{alpha}, v{alpha}')
        A(f'v_mov_b32 v{M}, v{mx}')
        A(f'v_cvt_pk_bf16_f32 v{plo}, v{p}, 0')
        A(f'v_cvt_pk_bf16_f32 v{phi}, 0, v{p}')
        A(f'v_fma_f32 v{Lr}, v{Lr}, v{alpha}, v{p}')
        for e in range(0, 8, 2):
            A(f'v_pk_mul_f32 v[{O+e}:{O+e+1}], v[{O+e}:{O+e+1}], v[{alpha}:{alpha+1}] op_sel_hi:[1,0]')
        if fixed is None: A.waitvm(('V', n))
        else: A.waitvm_n(fixed[1])
        for j in range(4):
            for r in range(4):
                A(f'v_dot2c_f32_bf16_dpp v{O+2*r}, v{plo}, v{V_(slot,j)+r} row_newbcast:{4*BANK[j]} {dm}')
                A(f'v_dot2c_f32_bf16_dpp v{O+2*r+1}, v{phi}, v{V_(slot,j)+r} row_newbcast:{4*BANK[j]} {dm}')
        if loads:
            for j in range(4):
                A.cap(); kv_load(slot, 'V', n + NS, j)
        for _ in range(nwo):
            A.cap(); wo_load()
    def merge_wave():
        A(f'v_add_f32_dpp v{Lr}, v{Lr}, v{Lr} row_ror:4 {dm}')
        A(f'v_mov_b32 v{t0}, v{M}')
        A(f'v_mov_b32 v{mx}, v{M}')
        A(f'v_add_f32_dpp v{Lr}, v{Lr}, v{Lr} row_ror:8 {dm}')
        A(f'v_permlane32_swap_b32 v{t0}, v{mx}')
        A(f'v_max_f32 v{t0}, v{t0}, v{mx}')
        A(f'v_mov_b32 v{mx}, v{t0}')
        A(f'v_permlane16_swap_b32 v{t0}, v{mx}')
        A(f'v_max_f32 v{t0}, v{t0}, v{mx}')
        A(f'v_sub_f32 v{alpha}, v{M}, v{t0}')
        A(f'v_mul_f32 v{alpha}, {sc}, v{alpha}')
        A(f'v_exp_f32 v{alpha}, v{alpha}')
        for e in range(0, 8, 2):
            A(f'v_pk_mul_f32 v[{O+e}:{O+e+1}], v[{O+e}:{O+e+1}], v[{alpha}:{alpha+1}] op_sel_hi:[1,0]')
        A(f'v_mul_f32 v{t1}, v{Lr}, v{alpha}')
        A(f'v_mul_f32 v{u}, v{Lr}, v{alpha}')
        for e in range(4): A(f'v_permlane32_swap_b32 v{O+e}, v{O+4+e}')
        A(f'v_permlane32_swap_b32 v{t1}, v{u}')
        for e in range(4): A(f'v_add_f32 v{O+e}, v{O+e}, v{O+4+e}')
        A(f'v_add_f32 v{t1}, v{t1}, v{u}')
        A(f'v_add_f32 v{u}, 0, v{t1}')
        for e in range(2): A(f'v_permlane16_swap_b32 v{O+e}, v{O+2+e}')
        A(f'v_permlane16_swap_b32 v{t1}, v{u}')
        for e in range(2): A(f'v_add_f32 v{O+e}, v{O+e}, v{O+2+e}')
        A(f'v_add_f32 v{t1}, v{t1}, v{u}')
    def flush(unit):
        merge_wave()
        A(f'ds_write_b64 v{vST}, v[{O}:{O+1}] offset:{unit*2048}')
        A(f'ds_write_b64 v{vML}, v[{t0}:{t1}] offset:{unit*32}')
    P1 = -(-len(wo_list) // WOB)
    P1 = (P1 + NS - 1) // NS * NS
    for n in range(P1):
        block(n % NS, n, min(WOB, len(wo_list)))
    assert not wo_list
    assert (128 - P1) % NS == 0 and (64 - P1) % NS == 0
    steady = 8 * (NS - 1) + 4
    A(f's_mov_b32 {sit}, {P1}')
    if rdymode == 1:
        A('s_lshr_b32 s38, s2, 3')
        A('s_and_b32 s38, s38, 7')
        A(f's_mul_i32 s38, s38, {NS}')
        A(f's_add_u32 s94, s38, {P1}')
        A('s_add_u32 s95, s38, 84')
        A(f's_cmp_eq_u32 {sw}, 0')
        A('s_cselect_b32 s94, s94, 1')
        A('s_cselect_b32 s95, s95, 1')
        A(f's_mov_b32 {srdy}, 0')
        if not sig.startswith('b'):
            A('v_mov_b32 v38, s90')
            A('v_mov_b32 v39, 1')
    A.label('L_loop')
    A(f's_cmp_eq_u32 {sit}, {64 - NS}')
    A(f's_cselect_b32 s38, {1<<25}, 0')
    A(f's_add_u32 {sub}, {sub}, s38')
    A(f's_add_u32 {soff}, {spos}, {sub}')
    A(f's_cmp_lg_u32 {sit}, 64')
    A('s_cbranch_scc1 L_noswitch')
    flush(0)
    for r in range(4): A(f'v_mov_b32 v{qA+r}, v{qB+r}')
    A('s_waitcnt lgkmcnt(0)')
    if not nordy and rdymode == 0: A(f's_atomic_add s89, {sdbg}, s90')
    reset()
    A.label('L_noswitch')
    if rdymode == 1 and not nordy:
        A(f's_cmp_eq_u32 {sit}, s94')
        A('s_cbranch_scc0 L_nosig')
        if sig == 's': A(f's_atomic_add s89, {sdbg}, s90')
        elif sig == 'b':
            A('s_mov_b64 exec, 1')
            A(f'global_store_byte v38, v39, {sdbg} sc1'); A.vm.pop()
            A('s_mov_b64 exec, -1')
        elif sig.startswith('v'):
            A('s_mov_b64 exec, 1')
            A(f'global_atomic_add v38, v39, {sdbg} {sig[1:]}'); A.vm.pop()
            A('s_mov_b64 exec, -1')
        A.label('L_nosig')
        A(f's_cmp_eq_u32 {sit}, s95')
        A('s_cbranch_scc0 L_nochk')
        if chk == 's': A(f's_atomic_add {srdy}, {sdbg}, s90 glc')
        elif chk == 'b':
            A('s_mov_b64 exec, 0xff')
            A(f'global_load_dword v39, v35, {sdbg} sc1'); A.vm.pop()
            A('s_mov_b64 exec, -1')
        elif chk.startswith('l'):
            A('s_mov_b64 exec, 1')
            A(f'global_load_dword v39, v38, {sdbg} {chk[1:]}'); A.vm.pop()
            A('s_mov_b64 exec, -1')
        A.label('L_nochk')
    for s in range(NS):
        block(s, 1000 + s, 0, fixed=(steady, steady))
    A(f's_add_u32 {sit}, {sit}, {NS}')
    A(f's_cmp_lg_u32 {sit}, {128 - NS}')
    A('s_cbranch_scc1 L_loop')
    if rdymode == 0:
        A(f's_mov_b32 {srdy}, {128 if nordy else 0}')
        if not nordy: A(f's_atomic_add {srdy}, {sdbg}, s90 glc')
    for s in range(NS):
        block(s, 2000 + s, 0, fixed=(8 * (NS - 1 - s) + 4, 8 * (NS - 1 - s)), loads=False)
    A.vm = []
    if stamps: A('s_memrealtime s[64:65]')
    flush(1)
    A('v_lshrrev_b32 v4, 7, v0')
    A('v_and_b32 v5, 127, v0')
    A('v_lshlrev_b32 v8, 5, v4')
    A('v_lshlrev_b32 v9, 11, v4')
    A('v_lshl_add_u32 v9, v5, 2, v9')
    A('v_lshlrev_b32 v10, 8, v4')
    A('v_lshl_add_u32 v10, v5, 1, v10')
    A('s_waitcnt lgkmcnt(0)')
    def rdyspin(n):
        A.label('L_rdy')
        A(f's_cmp_eq_u32 {srdy}, {n}')
        A('s_cbranch_scc1 L_go')
        A(f's_mov_b32 {srdy}, 0')
        A(f's_atomic_add {srdy}, {sdbg}, s90 glc')
        A('s_sub_u32 s91, s91, 1')
        A('s_cmp_eq_u32 s91, 0')
        A('s_cbranch_scc1 L_end')
        A('s_waitcnt lgkmcnt(0)')
        A('s_branch L_rdy')
        A.label('L_go')
    if rdymode == 1 and not nordy:
        A(f's_cmp_lg_u32 {sw}, 0')
        A('s_cbranch_scc1 L_go')
        if chk.startswith('l'): A(f'v_readfirstlane_b32 {srdy}, v39')
        if chk == 'n' or sig == 'n': A(f's_mov_b32 {srdy}, 32')
        if chk == 'b':
            A('s_mov_b64 exec, 0xff')
            A.label('L_rdy')
            A('v_cmp_ne_u32 vcc, 0x01010101, v39')
            A('s_cbranch_vccz L_rdyok')
            A(f'global_load_dword v39, v35, {sdbg} sc1'); A.vm.pop()
            A('s_sub_u32 s91, s91, 1')
            A('s_cmp_eq_u32 s91, 0')
            A('s_cbranch_scc1 L_end')
            A('s_waitcnt vmcnt(0)')
            A('s_branch L_rdy')
            A.label('L_rdyok')
            A('s_mov_b64 exec, -1')
            A.label('L_go')
        else: rdyspin(32)
    A('s_barrier')
    T = RING
    for k in range(2):
        A(f'ds_read_b128 v[{T+4*k}:{T+4*k+3}], v8 offset:{ML+16*k}')
    for k in range(4):
        A(f'ds_read_b32 v{T+8+k}, v9 offset:{512*k}')
    A('v_and_b32 v5, 63, v0')
    A('v_lshrrev_b32 v6, 4, v5')
    A('v_and_b32 v7, 15, v5')
    A('v_lshrrev_b32 v11, 3, v7')
    A('v_lshlrev_b32 v11, 8, v11')
    A('v_lshl_add_u32 v11, v6, 6, v11')
    for k in range(4):
        A(f's_lshl_b32 s38, s{74+k}, 4')
        A(f'v_add_u32 v{12+k}, s38, v11')
    A('s_waitcnt lgkmcnt(4)')
    A(f'v_max3_f32 v{mx}, v{T}, v{T+2}, v{T+4}')
    A(f'v_max_f32 v{mx}, v{mx}, v{T+6}')
    A(f'v_mul_f32 v{nmc}, {sc}, v{mx}')
    for k in range(4): A(f'v_fma_f32 v{T+2*k}, v{T+2*k}, {sc}, -v{nmc}')
    for k in range(4): A(f'v_exp_f32 v{T+2*k}, v{T+2*k}')
    A(f'v_mul_f32 v{t0}, v{T}, v{T+1}')
    for k in range(1, 4): A(f'v_fmac_f32 v{t0}, v{T+2*k}, v{T+2*k+1}')
    A(f'v_rcp_f32 v{t0}, v{t0}')
    A('s_waitcnt lgkmcnt(0)')
    A(f'v_mul_f32 v{t1}, v{T}, v{T+8}')
    for k in range(1, 4): A(f'v_fmac_f32 v{t1}, v{T+2*k}, v{T+8+k}')
    A(f'v_mul_f32 v{t1}, v{t1}, v{t0}')
    A(f'v_cvt_pk_bf16_f32 v{t1}, v{t1}, v{t1}')
    A(f'ds_write_b16 v10, v{t1} offset:{OB}')
    A('v_lshrrev_b32 v9, 2, v7')
    A('v_lshlrev_b32 v9, 13, v9')
    A('v_lshrrev_b32 v8, 1, v6')
    A('v_lshl_add_u32 v9, v8, 7, v9')
    A('v_and_b32 v8, 3, v7')
    A('v_lshl_add_u32 v9, v8, 5, v9')
    A('v_and_b32 v8, 1, v6')
    A('v_lshl_add_u32 v9, v8, 4, v9')
    A(f's_lshl_b32 s37, {sgrp}, 18')
    A(f's_lshl_b32 s38, {sw}, 16')
    A('s_add_u32 s37, s37, s38')
    A(f's_lshl_b32 s38, {sh}, 8')
    A('s_add_u32 s37, s37, s38')
    A('s_add_u32 s39, s37, 32768')
    A('s_waitcnt lgkmcnt(0)')
    A('s_barrier')
    for k in range(4):
        A(f'ds_read_b128 v[{T+4*k}:{T+4*k+3}], v{12+k} offset:{OB}')
    for rg in range(32):
        if rg % 8 == 0: A(f's_waitcnt lgkmcnt({3 - rg//8})')
        fr = FR[rg & 1]
        for r in range(4):
            A(f'v_perm_b32 v{fr+r}, v{T+(rg>>1)}, v{T+(rg>>1)}, v{SEL+2*r+(rg&1)}')
        for ch in range(2):
            i = 2 * rg + ch
            c = '0' if rg == 0 else f'v[{ACC[ch]}:{ACC[ch]+3}]'
            A(f'v_mfma_f32_16x16x32_bf16 v[{ACC[ch]}:{ACC[ch]+3}], v[{fr}:{fr+3}], a[{4*i}:{4*i+3}], {c}')
    if rdymode == 0: rdyspin(128)
    A('s_nop 7')
    A(f'buffer_store_dwordx4 v[{ACC[0]}:{ACC[0]+3}], v9, {sP}, s37 offen sc1')
    A(f'buffer_store_dwordx4 v[{ACC[1]}:{ACC[1]+3}], v9, {sP}, s39 offen sc1')
    if stamps:
        A(f's_cmp_eq_u32 {sw}, 0')
        A('s_cbranch_scc1 L_red')
        A('s_memrealtime s[66:67]')
        A('s_branch L_stamp')
        A.label('L_red')
    else:
        A(f's_cmp_lg_u32 {sw}, 0')
        A('s_cbranch_scc1 L_end')
    A('v_lshlrev_b32 v8, 4, v5')
    if nored:
        A('s_memrealtime s[66:67]')
        A('s_branch L_stamp')
    A('s_mov_b32 s40, 1')
    A('s_atomic_add s40, s[92:93], 0 glc')
    A('s_waitcnt lgkmcnt(0)')
    A('s_add_u32 s40, s40, 1')
    A.label('L_gate')
    A(f's_cmp_ge_u32 s40, {TH}')
    A('s_cbranch_scc1 L_gated')
    A(f's_cmp_ge_u32 s40, {TH - 4}')
    A('s_cbranch_scc1 L_short')
    A(f's_sleep {gs1}')
    A.label('L_short')
    A(f's_sleep {gs2}')
    A('s_mov_b32 s40, 0')
    A('s_atomic_add s40, s[92:93], 0 glc')
    A('s_sub_u32 s91, s91, 1')
    A('s_cmp_eq_u32 s91, 0')
    A('s_cbranch_scc1 L_end')
    A('s_waitcnt lgkmcnt(0)')
    A('s_branch L_gate')
    A.label('L_gated')
    A('s_mov_b32 s40, 0xff')
    A.label('L_poll')
    for k in range(8):
        A(f's_bitcmp1_b32 s40, {k}')
        A(f's_cbranch_scc0 L_skipld{k}')
        A(f'buffer_load_dwordx4 v[{T+4*k}:{T+4*k+3}], v8, {sP}, {"s86" if k < 4 else "s41"} offen offset:{(k&3)*1024} sc1')
        A.label(f'L_skipld{k}')
        if k == 3: A('s_add_u32 s41, s86, 4096')
    A('s_waitcnt vmcnt(0)')
    A.vm = []
    A('s_mov_b32 s40, 0')
    for k in range(8):
        A(f'v_max3_u32 v10, v{T+4*k}, v{T+4*k+1}, v{T+4*k+2}')
        A(f'v_max_u32 v10, v10, v{T+4*k+3}')
        A('v_cmp_eq_u32 vcc, -1, v10')
        A('s_cmp_lg_u64 vcc, 0')
        A(f's_cselect_b32 s38, {1<<k}, 0')
        A('s_or_b32 s40, s40, s38')
    A('s_cmp_eq_u32 s40, 0')
    A('s_cbranch_scc1 L_sum')
    if slp: A(f's_sleep {slp}')
    A('s_sub_u32 s91, s91, 1')
    A('s_cmp_lg_u32 s91, 0')
    A('s_cbranch_scc1 L_poll')
    A('s_branch L_end')
    A.label('L_sum')
    for st in (16, 8, 4):
        for k in range(st): A(f'v_add_f32 v{T+k}, v{T+k}, v{T+st+k}')
    for e in range(4): A(f'v_mov_b32 v{T+4+e}, v{T+e}')
    for e in range(4): A(f'v_permlane32_swap_b32 v{T+e}, v{T+4+e}')
    for e in range(4): A(f'v_add_f32 v{T+e}, v{T+e}, v{T+4+e}')
    for e in range(4): A(f'v_mov_b32 v{T+4+e}, v{T+e}')
    for e in range(4): A(f'v_permlane16_swap_b32 v{T+e}, v{T+4+e}')
    for e in range(4): A(f'v_add_f32 v{T+e}, v{T+e}, v{T+4+e}')
    A(f'v_cvt_pk_bf16_f32 v{T}, v{T}, v{T+1}')
    A(f'v_cvt_pk_bf16_f32 v{T+1}, v{T+2}, v{T+3}')
    A('v_lshrrev_b32 v10, 3, v7')
    A('v_and_b32 v11, 7, v7')
    A('v_lshlrev_b32 v10, 12, v10')
    A('v_lshl_add_u32 v10, v11, 3, v10')
    A(f's_lshl_b32 s37, {sbp}, 13')
    A(f's_lshl_b32 s38, {sbr}, 11')
    A('s_add_u32 s37, s37, s38')
    A(f's_lshl_b32 s38, {sh}, 6')
    A('s_add_u32 s37, s37, s38')
    A('s_mov_b64 exec, 0xffff')
    A(f'buffer_store_dwordx2 v[{T}:{T+1}], v10, {sOut}, s37 offen')
    if stamps:
        A('s_mov_b64 exec, -1')
        A('s_memrealtime s[66:67]')
        A.label('L_stamp')
        A('s_waitcnt lgkmcnt(0)')
        if dbgst:
            A('s_not_b32 s37, s60')
            A('s_not_b32 s38, s64')
            A('s_and_b32 s39, s2, 7')
            A('s_lshl_b32 s39, s39, 2')
            A('s_add_u32 s39, s39, 32')
            A('v_mov_b32 v4, 0')
            A('v_mov_b32 v5, s39')
            for k, r in enumerate(('s37', 's60', 's62', 's38', 's64', 's66')): A(f'v_mov_b32 v{8+k}, {r}')
            A('s_mov_b64 exec, 1')
            for k in range(6): A(f'global_atomic_umax v4, v{8+k}, {sdbg} offset:{4*k}')
            A(f'global_atomic_umax v5, v12, {sdbg}')
        else:
            A('s_lshl_b32 s37, s2, 2')
            A(f's_add_u32 s37, s37, {sw}')
            A('s_lshl_b32 s37, s37, 5')
            A('s_add_u32 s37, s37, 0x4000000')
            A('v_mov_b32 v4, s37')
            for k in range(8): A(f'v_mov_b32 v{8+k}, s{60+k}')
            A('global_store_dwordx4 v4, v[8:11], s[20:21]')
            A('global_store_dwordx4 v4, v[12:15], s[20:21] offset:16')
    A.label('L_end')
    A('s_endpgm')
    A.raw('.section .rodata,"a"')
    A.raw('.p2align 6')
    A.raw(f'.amdhsa_kernel {KN}')
    for l in ('next_free_vgpr 512', 'next_free_sgpr 96', 'accum_offset 256', 'group_segment_fixed_size 0', 'kernarg_size 104',
              'user_sgpr_count 2', 'user_sgpr_kernarg_segment_ptr 1', 'system_sgpr_workgroup_id_x 1'):
        A.raw('  .amdhsa_' + l)
    A.raw('.end_amdhsa_kernel')
    return A.text()

if __name__ == '__main__':
    for spec in sys.argv[1:]:
        kw = {}
        for kv in spec.split(','):
            if not kv or kv == 'x': continue
            k, v = kv.split('=')
            kw[k] = int(v) if v.lstrip('-').isdigit() else v.replace('+', ' ').replace('none', '')
        name = 'k3_' + spec.replace('=', '').replace(',', '_').replace('+', '') + '.s'
        open(name, 'w').write(gen(**kw))
        print(name)
```

```python
import sys, math, struct
from asmlib import Asm
KN = 'concat_heads__mha_block_cached__mha_block_cached__decode_kernel'
def f2u(x): return struct.unpack('<I', struct.pack('<f', x))[0]

def gen(kvpol='nt', wpol='', stg=1, stamps=0, pst=0, N=6, PRE=16, R1=4, IL=0, WIN=32, late=12, slp=2, rot=1, clrpol='sc1',
        QS=10, QR=1.0, AS=70, AR=1.0, BS=12, BR=1.0, DL=1, CP=16, rw=1, RK=10, C0=48, C1=250, C2=999, CP2=8, DS=1, hmap=1, L3=0, RK2=4, TS=16, sl=1, sp=1, pad=0, header=''):
    sa = qb0 = NX = NV = 0
    QR, AR, BR = float(QR), float(AR), float(BR)
    noclr = now = ec = cpos = 0
    w0pol = wpol; NQ0 = 8
    A = Asm()
    QP = [0, 2048]; ST = [4096, 6144]; ML = [8192, 8224]; OB = [8256, 8512]
    MD = 8768
    LDS = MD + 16
    WS_FL = 0x200000; WS_TW = 0x210000; WS_END = 0x240000
    A.raw(header + f'; @launch grid=(256,1,1) block=(256,1,1) lds={LDS}')
    if stamps: A.raw(f'; STAMPS 1024 8 {0x4000000}')
    A.raw('.amdgcn_target "amdgcn-amd-amdhsa--gfx950"')
    A.raw('.text')
    A.raw(f'.globl {KN}')
    A.raw('.p2align 8')
    A.raw(f'.type {KN},@function')
    A.label(KN)
    vKV, vWQ, vWO = 1, 2, 3
    Q, QB = 4, 8; PN = 8
    O = 12; M = 20; L = 21
    a = [22, 23, 24, 25]; t0, t1, p, mx, plo, phi = 26, 27, 28, 29, 30, 31
    PC = 32; vST, vPT, SB = 36, 37, 38
    SEL = 40; FR = [48, 52]; ACC = [56, 60]
    RING = 64; XD = 128; TQ = 160; SC = 192
    R_ = lambda k: RING + 4 * (k % 16)
    KV = ['s[4:7]', 's[8:11]', 's[12:15]', 's[16:19]']
    sP, sW, sX, sOut = 's[20:23]', 's[24:27]', 's[28:31]', 's[32:35]'
    sw, sh, sb, sx, soff, spos, sub, sc = 's64', 's65', 's66', 's67', 's68', 's69', 's70', 's71'
    swb, swo = 's72', 's73'; STG = 74
    sdbg = 's[82:83]'; stkt = 's[84:85]'; sinb, sspin, sflo, sflt = 's86', 's87', 's88', 's94'
    ssnap = 's[90:91]'; sold = 's[92:93]'; sxv, stk, smask, slown, scown, stj, scur, snxt = 's89', 's94', 's95', 's96', 's97', 's98', 's99', 's100'
    PX, PWQ, PWO = [40, 50], [46, 56], [48, 58]
    def pstamp(i):
        if pst: stamp(i, True)
    def stamp(i, force=False):
        if stamps and (force or not pst or i == 7):
            A('s_memrealtime s[60:61]')
            A('s_waitcnt lgkmcnt(0)')
            A(f'v_writelane_b32 v0, s60, {62 - 2*i if False else 0}') if False else None
            A(f's_mov_b32 s{STS[i]}, s60')
    STS = [3, 36, 89, 90, 91, 92, 93, 2]
    def base(srd, ptr):
        r = int(srd[2:srd.index(':')])
        A(f's_mov_b32 s{r}, s{ptr}'); A(f's_mov_b32 s{r+1}, s{ptr+1}')
    A('s_cmp_ge_u32 s2, 256')
    A('s_cbranch_scc0 L_start')
    A('s_endpgm')
    A.label('L_start')
    A('s_load_dwordx16 s[40:55], s[0:1], 0')
    A('s_load_dwordx4 s[56:59], s[0:1], 64')
    A('s_load_dwordx2 s[20:21], s[0:1], 96')
    A('s_load_dwordx2 s[32:33], s[0:1], 80')
    A('s_load_dwordx2 s[82:83], s[0:1], 88')
    if stamps: A('s_memrealtime s[60:61]')
    if pad: A('s_memrealtime s[62:63]')
    A('v_lshrrev_b32 v4, 6, v0')
    A('v_and_b32 v5, 63, v0')
    A(f'v_readfirstlane_b32 {sw}, v4')
    A('v_lshrrev_b32 v6, 4, v5')
    A('v_and_b32 v7, 15, v5')
    A(f'v_lshlrev_b32 v{vKV}, 4, v5')
    A('v_lshlrev_b32 v8, 4, v7')
    A(f'v_lshl_add_u32 v{vWQ}, v6, 19, v8')
    A(f'v_lshl_add_u32 v{vWO}, v6, 16, v8')
    A('v_lshlrev_b32 v9, 7, v6')
    A(f's_and_b32 {sx}, s2, 7')
    A('s_lshr_b32 s37, s2, 3')
    A(f's_and_b32 {sb}, s37, 7')
    A('s_lshr_b32 s37, s2, 6')
    if hmap == 0:
        A('s_lshl_b32 s37, s37, 3')
        A(f's_or_b32 {sh}, s37, {sx}')
    else:
        A(f's_lshl_b32 s38, {sx}, 2')
        A(f's_or_b32 {sh}, s37, s38')
    for r, n in ((6, 0x10000000), (10, 0x10000000), (14, 0x10000000), (18, 0x10000000), (22, WS_END), (26, 0x800000), (30, 16384), (34, 32768)):
        A(f's_mov_b32 s{r}, {hex(n)}')
        A(f's_mov_b32 s{r+1}, 0x20000')
    A(f's_lshl_b32 s37, {sw}, 21')
    A(f's_lshl_b32 s38, {sh}, 8')
    A(f's_add_u32 {swb}, s37, s38')
    for t in range(8):
        if stg:
            A(f's_add_u32 s38, {sb}, {t}')
            A(f's_and_b32 s{STG+t}, s38, 7')
        else: A(f's_mov_b32 s{STG+t}, {t}')
    A(f's_lshl_b32 {sub}, {sb}, 25')
    A(f's_lshl_b32 s38, {sh}, 20')
    A(f's_add_u32 {sub}, {sub}, s38')
    if rot:
        A('s_and_b32 s38, s2, 63')
        A('s_lshl_b32 s38, s38, 14')
    else: A('s_mov_b32 s38, 0')
    A(f's_lshl_b32 {spos}, {sw}, 12')
    A(f's_add_u32 {spos}, {spos}, s38')
    A(f's_add_u32 {soff}, {spos}, {sub}')
    A('s_waitcnt lgkmcnt(0)')
    if stamps: A(f's_mov_b32 s{STS[0]}, s60')
    base(sW, PWQ[0]); base(sX, PX[0])
    base(KV[0], 42)
    if ec:
        A(f's_lshl_b32 s38, {sb}, 5')
        A(f's_add_u32 s38, s38, {sh}')
        A(f's_lshl_b32 {sinb}, s38, 13')
        A(f's_cmp_eq_u32 {sw}, 0')
        A('s_cbranch_scc0 L_noclr')
        for k in range(4): A(f'v_mov_b32 v{12+k}, -1')
        A(f's_add_u32 s38, {sinb}, 4096')
        for k in range(8):
            A(f'buffer_store_dwordx4 v[12:15], v{vKV}, {sP}, {sinb if k < 4 else "s38"} offen offset:{(k & 3) * 1024} {clrpol}'); A.vm.pop()
        A.label('L_noclr')
    def wq_load(br, jj):
        if jj % 8 == 0:
            A(f's_lshl_b32 {swo}, s{STG + jj//8}, 16')
            A(f's_add_u32 {swo}, {swo}, {swb}')
        A(f'buffer_load_dwordx4 a[{4*jj}:{4*jj+3}], v{vWQ}, {sW}, {swo} offen {w0pol if jj < 8 else wpol}', tag=('wq', br, jj))
        if jj % 8 != 7: A(f's_add_u32 {swo}, {swo}, 8192')
    def x_loads(br, vaddr):
        A(f's_lshl_b32 s37, {sb}, 11')
        A(f's_lshl_b32 s38, {sw}, 9')
        A('s_add_u32 s37, s37, s38')
        for t in range(8):
            A(f's_lshl_b32 s38, s{STG+t}, 4')
            A('s_add_u32 s38, s38, s37')
            A(f'buffer_load_dwordx4 v[{XD+4*t}:{XD+4*t+3}], v{vaddr}, {sX}, s38 offen', tag=('x', br))
    def advance():
        A(f's_add_u32 {spos}, {spos}, 0x4000')
        A(f's_and_b32 {spos}, {spos}, 0xfffff')
        A(f's_add_u32 {soff}, {spos}, {sub}')
    nxt = [0]
    def kv_load():
        k = nxt[0]; nxt[0] += 1
        r = R_(k)
        A(f'buffer_load_dwordx4 v[{r}:{r+3}], v{vKV}, {KV[k >> 8]}, {soff} offen offset:{1024*(k&3)} {kvpol}', tag=('kv', k))
        if k & 3 == 3 and k != 1023: advance()
    if NQ0 > 8: x_loads(0, 9)
    for jj in range(NQ0): wq_load(0, jj)
    pstamp(1)
    if NQ0 <= 8: x_loads(0, 9)
    for _ in range(R1): kv_load()
    pstamp(2)
    base(KV[1], 44); base(KV[2], 52); base(KV[3], 54)
    A(f's_mov_b32 {sspin}, 0x80000')
    if not ec:
        A(f's_lshl_b32 s38, {sb}, 5')
        A(f's_add_u32 s38, s38, {sh}')
        A(f's_lshl_b32 {sinb}, s38, 13')
        A('v_lshlrev_b32 v10, 4, v0')
        for k in range(4): A(f'v_mov_b32 v{12+k}, -1')
        A(f'v_mov_b32 v{PC}, v10')
        def clears():
            A(f'buffer_store_dwordx4 v[12:15], v{PC}, {sP}, {sinb} offen {clrpol}', tag='clr')
            A(f's_add_u32 s38, {sinb}, 4096')
            A(f'buffer_store_dwordx4 v[12:15], v{PC}, {sP}, s38 offen {clrpol}', tag='clr')
        clears()
        A(f's_lshl_b32 s38, {sw}, 3')
        A(f's_add_u32 s38, s38, {sb}')
        A('s_lshl_b32 s38, s38, 10')
        A(f's_add_u32 s38, s38, {WS_FL}')
        A(f's_cmp_eq_u32 {sh}, 0')
        A('s_cselect_b32 s38, s38, 0x40000000')
        for k in range(4): A(f'v_mov_b32 v{16+k}, 0')
        A(f'buffer_store_dwordx4 v[16:19], v{vKV}, {sP}, s38 offen {clrpol}', tag='clr')
        if sa:
            A(f's_lshl_b32 s38, {sw}, 3')
            A(f's_add_u32 s38, s38, {sb}')
            A('s_mul_i32 s38, s38, 4352')
            A(f's_add_u32 s38, s38, {WS_TW}')
            A(f's_cmp_eq_u32 {sh}, 0')
            A('s_cselect_b32 s38, s38, 0x40000000')
            A('s_mov_b64 exec, 0xff')
            A(f'buffer_store_dwordx4 v[16:19], v{vKV}, {sP}, s38 offen {clrpol}', tag='clr')
            A('s_mov_b64 exec, -1')
            A('s_lshr_b32 s38, s2, 3')
            A('s_mul_i32 s38, s38, 4352')
            A(f's_add_u32 s38, s38, {WS_TW}')
            A('s_add_u32 s84, s20, s38')
            A('s_addc_u32 s85, s21, 0')
        A(f'v_mov_b32 v24, {1 if L3 else 0}')
        A(f'ds_write_b32 v16, v24 offset:{MD}')
        A('s_lshl_b32 s38, s2, 7')
        A(f's_add_u32 {sflo}, s38, {WS_FL}')
        A(f's_and_b32 s38, s38, {hex({8: 0x7c00, 16: 0x5c00, 32: 0x1c00, 64: 0x1800}[TS])}')
        A(f's_add_u32 {sflt}, s38, {WS_FL}')
    A(f's_mov_b32 {sc}, {hex(f2u(math.log2(math.e) / math.sqrt(128.0)))}')
    A('v_and_b32 v10, 7, v7')
    A('v_lshrrev_b32 v11, 1, v10')
    A('v_and_b32 v10, 1, v10')
    A('v_cmp_eq_u32 vcc, 1, v10')
    A('v_mov_b32 v20, 0x0c0c0100'); A('v_mov_b32 v21, 0x01000c0c')
    A('v_cndmask_b32 v22, v20, v21, vcc')
    A('v_mov_b32 v20, 0x0c0c0302'); A('v_mov_b32 v21, 0x03020c0c')
    A('v_cndmask_b32 v23, v20, v21, vcc')
    A('v_mov_b32 v20, 0x0c0c0c0c')
    for r in range(4):
        A(f'v_cmp_eq_u32 vcc, {r}, v11')
        A(f'v_cndmask_b32 v{SEL+2*r}, v20, v22, vcc')
        A(f'v_cndmask_b32 v{SEL+2*r+1}, v20, v23, vcc')
    A(f's_lshl_b32 s38, {sw}, 9')
    A(f'v_lshlrev_b32 v{vST}, 3, v6')
    A(f'v_lshl_add_u32 v{vST}, v7, 5, v{vST}')
    A(f'v_add_u32 v{vST}, s38, v{vST}')
    def q_mfma(br, jj):
        fr = FR[jj & 1]
        for r in range(4):
            A(f'v_perm_b32 v{fr+r}, v{XD+(jj>>1)}, v{XD+(jj>>1)}, v{SEL+2*r+(jj&1)}')
        A.waitvm(('wq', br, jj))
        c = '0' if jj == 0 else f'v[{ACC[0]}:{ACC[0]+3}]'
        A(f'v_mfma_f32_16x16x32_bf16 v[{ACC[0]}:{ACC[0]+3}], v[{fr}:{fr+3}], a[{4*jj}:{4*jj+3}], {c}')
    def q_write(br):
        A(f'v_lshrrev_b32 v{t0}, 8, v{vKV}')
        A(f'v_and_b32 v{t1}, 0xf0, v{vKV}')
        A(f'v_lshlrev_b32 v{t0}, 4, v{t0}')
        A(f'v_lshl_add_u32 v{t0}, v{t1}, 1, v{t0}')
        A(f's_lshl_b32 s38, {sw}, 9')
        A(f'v_add_u32 v{t0}, s38, v{t0}')
        A('s_mov_b64 exec, 0xffffffff')
        A(f'ds_write_b128 v{t0}, v[{ACC[0]}:{ACC[0]+3}] offset:{QP[br]}')
        A('s_mov_b64 exec, -1')
    def q_read(br, T, q):
        A(f'v_and_b32 v{t0}, 0xf0, v{vKV}')
        A(f'v_lshlrev_b32 v{t0}, 1, v{t0}')
        for hlf in range(2):
            for w in range(4):
                r = T + 4 * w
                A(f'ds_read_b128 v[{r}:{r+3}], v{t0} offset:{QP[br] + w*512 + 16*hlf}')
            A('s_waitcnt lgkmcnt(0)')
            for e in range(4):
                A(f'v_add_f32 v{T+e}, v{T+e}, v{T+4+e}')
                A(f'v_add_f32 v{T+8+e}, v{T+8+e}, v{T+12+e}')
            for e in range(4): A(f'v_add_f32 v{T+e}, v{T+e}, v{T+8+e}')
            for r in range(2): A(f'v_cvt_pk_bf16_f32 v{q+2*hlf+r}, v{T+2*r}, v{T+2*r+1}')
    rest = []
    qbl = [0]
    def qb_load():
        k = qbl[0]; qbl[0] += 1
        if k == 0:
            A(f's_mov_b32 s96, s{PWQ[1]}'); A(f's_mov_b32 s97, s{PWQ[1]+1}'); A('s_mov_b32 s98, 0x800000'); A('s_mov_b32 s99, 0x20000')
            A(f's_lshl_b32 s100, s{STG}, 16')
            A(f's_add_u32 s100, s100, {swb}')
        A(f'buffer_load_dwordx4 a[{4*k}:{4*k+3}], v{vWQ}, s[96:99], s100 offen {wpol}', tag=('wq', 1, k))
        A('s_add_u32 s100, s100, 8192')
    hbm = [kv_load] * IL + [qb_load] * (8 if qb0 else 0)
    nh = len(hbm)
    for jj in range(NQ0, 64):
        rest.append(lambda jj=jj: wq_load(0, jj))
        if (jj - NQ0 + 1) * nh // 56 > (jj - NQ0) * nh // 56: rest.append(hbm.pop(0))
    if cpos == 1 and not noclr: rest.append(clears)
    rest += [kv_load] * (PRE - R1 - IL - late)
    if cpos == 2 and not noclr: rest.append(clears)
    def signal():
        A(f's_or_b32 s38, {sw}, {sh}')
        A('s_cmp_eq_u32 s38, 0')
        A('s_cbranch_scc0 L_nosig')
        A(f's_lshl_b32 s38, {sb}, 2')
        A(f'v_mov_b32 v{t0}, s38')
        A(f'v_mov_b32 v{t1}, 1')
        A('s_mov_b64 exec, 1')
        A(f'global_store_dword v{t0}, v{t1}, {sdbg} sc1'); A.vm.pop()
        A('s_mov_b64 exec, -1')
        A.label('L_nosig')
    pstamp(3)
    A.waitvm(('x', 0))
    if ec: signal()
    pstamp(4)
    while rest and len(A.vm) < WIN: rest.pop(0)()
    pstamp(5)
    for jj in range(64):
        q_mfma(0, jj)
        while rest and len(A.vm) < WIN:
            assert rest[0] is not qb_load or qbl[0] <= jj
            rest.pop(0)()
    pstamp(6)
    assert not rest and (cpos or 'clr' not in A.vm)
    q_write(0)
    for _ in range(late): kv_load()
    A('s_waitcnt lgkmcnt(0)')
    A('s_barrier')
    q_read(0, XD, Q)
    if not ec and not cpos: signal()
    stamp(1)
    BANK = [0, 2, 1, 3]
    def refill(k):
        hb = k >> 2
        Nk = N
        while nxt[0] < min(max(k + 1 + Nk, min(k + 17, PRE + N)), 1024):
            if DL and nxt[0] + 1 < min(max(k + 1 + Nk, min(k + 17, PRE + N)), 1024):
                A.cap(58); kv_load(); continue
            if DL and 4 * C0 + 16 <= k and k % DS == 0 and ('kv', k + DL) in A.vm:
                n = len(A.vm) - 1 - A.vm.index(('kv', k + DL))
                A(f's_cbranch_vccz L_d{k}')
                A(f's_waitcnt vmcnt({n})')
                if L3 and ('kv', k + DL + 1) in A.vm:
                    n = len(A.vm) - 1 - A.vm.index(('kv', k + DL + 1))
                    A('s_cmp_eq_u32 s95, 2')
                    A(f's_cbranch_scc0 L_d{k}')
                    A(f's_waitcnt vmcnt({n})')
                A.label(f'L_d{k}')
            elif L3 and k < 4 * C0 + 16 and k >= PRE and ('kv', k + 1) in A.vm:
                A.waitvm(('kv', k + 1))
            A.cap(58); kv_load()
    def wave0(tagl, body, w=0):
        A(f's_cmp_eq_u32 {sw}, {w}')
        A(f's_cbranch_scc0 L_w{tagl}')
        body()
        A.label(f'L_w{tagl}')
    def post(val):
        A(f'v_mov_b32 v{t0}, 0')
        A(f'v_mov_b32 v{t1}, {val}')
        A('s_mov_b64 exec, 1')
        A(f'buffer_store_dword v{t1}, v{t0}, {sP}, {sflo} offen sc1'); A.vm.pop()
        A('s_mov_b64 exec, -1')
    SL = list(range(40, 48)) + list(range(50, 58))
    def pace(hb):
        if not DL or hb < C0 or hb > C1: return
        ph = (hb - C0) % CP; val = 2 + (hb - C0) // CP
        if hb >= C2:
            assert (C2 - C0) % CP == 0
            ph = (hb - C2) % CP2; val = 2 + (C2 - C0) // CP + (hb - C2) // CP2
        nb = max(1, TS // 16); per = TS // nb
        def loads(bt):
            for k in range(per):
                m = bt * per + k
                A(f's_add_u32 s38, {sflt}, {128 * (m & 7) + 8192 * ((m >> 3) & 3) + 1024 * (m >> 5)}')
                A(f's_load_dword s{SL[k]}, s[20:21], s38 glc')
        def count():
            A('s_waitcnt lgkmcnt(0)')
            for k in range(per):
                A(f's_cmp_ge_u32 s{SL[k]}, {val}')
                A('s_addc_u32 s101, s101, 0')
        if ph <= max(nb, 2):
            def body():
                if ph == 0:
                    A(f's_mov_b32 s100, {val}')
                    A(f's_atomic_umax s100, s[20:21], {sflo}')
                    A('s_mov_b32 s101, 0')
                last = max(nb, 2)
                if 0 < ph < nb or ph == last: count()
                if ph < nb: loads(ph)
                if ph == last:
                    if L3:
                        A(f's_cmp_lt_u32 s101, {RK2}')
                        A('s_cselect_b32 s60, 2, 1')
                        A(f's_cmp_lt_u32 s101, {RK}')
                        A('s_cselect_b32 s38, s60, 0')
                    else:
                        A(f's_cmp_lt_u32 s101, {RK}')
                        A('s_cselect_b32 s38, -1, 0')
                    A(f'v_mov_b32 v{t0}, 0')
                    A(f'v_mov_b32 v{t1}, s38')
                    A(f'ds_write_b32 v{t0}, v{t1} offset:{MD}')
            if ph < nb or ph == max(nb, 2): wave0(f'p{hb}', body, val % 4 if rw else 0)
        ph -= max(nb, 2) - 2
        if ph == 3:
            A(f'v_mov_b32 v{t0}, 0')
            A(f'ds_read_b32 v{PC+2}, v{t0} offset:{MD}')
        if ph == 4:
            A('s_waitcnt lgkmcnt(0)')
            A(f'v_cmp_ne_u32 vcc, 0, v{PC+2}')
            if L3: A(f'v_readfirstlane_b32 s95, v{PC+2}')
    def kblock(hb):
        n = hb & 63; u = SC + n
        for j in range(4):
            k = 4 * hb + j
            A.waitvm(('kv', k))
            for r in range(4):
                c = '0' if r == 0 else f'v{a[j]}'
                A(f'v_dot2_f32_bf16 v{a[j]}, v{R_(k)+r}, v{Q+r}, {c}')
            refill(k)
        A(f'v_add_f32_dpp v{t0}, v{a[0]}, v{a[0]} row_ror:8 row_mask:0xf bank_mask:0x3')
        A(f'v_add_f32_dpp v{t1}, v{a[2]}, v{a[2]} row_ror:8 row_mask:0xf bank_mask:0x3')
        A(f'v_add_f32_dpp v{t0}, v{a[1]}, v{a[1]} row_ror:8 row_mask:0xf bank_mask:0xc')
        A(f'v_add_f32_dpp v{t1}, v{a[3]}, v{a[3]} row_ror:8 row_mask:0xf bank_mask:0xc')
        A(f'v_add_f32_dpp v{p}, v{t0}, v{t0} row_half_mirror row_mask:0xf bank_mask:0x5')
        A(f'v_add_f32_dpp v{p}, v{t1}, v{t1} row_half_mirror row_mask:0xf bank_mask:0xa')
        A(f'v_add_f32_dpp v{p}, v{p}, v{p} quad_perm:[1,0,3,2]')
        A(f'v_add_f32_dpp v{u}, v{p}, v{p} quad_perm:[2,3,0,1]')
        if n == 0: A(f'v_mov_b32 v{M}, v{u}')
        else: A(f'v_max_f32 v{M}, v{M}, v{u}')
    def wave_max():
        A(f'v_max_f32_dpp v{M}, v{M}, v{M} row_ror:4')
        A(f'v_max_f32_dpp v{M}, v{M}, v{M} row_ror:8')
        A(f'v_mov_b32 v{t0}, v{M}')
        A(f'v_permlane32_swap_b32 v{M}, v{t0}')
        A(f'v_max_f32 v{M}, v{M}, v{t0}')
        A(f'v_mov_b32 v{t0}, v{M}')
        A(f'v_permlane16_swap_b32 v{M}, v{t0}')
        A(f'v_max_f32 v{M}, v{M}, v{t0}')
        A(f'v_mul_f32 v{mx}, {sc}, v{M}')
        A(f'v_mov_b32 v{L}, 0')
        clear_o()
    def clear_o():
        for e in range(8): A(f'v_mov_b32 v{O+e}, 0')
    def prob(n, dst):
        A(f'v_fma_f32 v{dst}, v{SC+n}, {sc}, -v{mx}')
        A(f'v_exp_f32 v{dst}, v{dst}')
    def vblock(hb):
        n = hb & 63
        prob(n, p)
        A(f'v_cvt_pk_bf16_f32 v{plo}, v{p}, 0')
        A(f'v_cvt_pk_bf16_f32 v{phi}, 0, v{p}')
        A(f'v_add_f32 v{L}, v{L}, v{p}')
        for j in range(4):
            k = 4 * hb + j
            A.waitvm(('kv', k))
            for r in range(4):
                A(f'v_dot2c_f32_bf16_dpp v{O+2*r}, v{plo}, v{R_(k)+r} row_newbcast:{4*BANK[j]}')
                A(f'v_dot2c_f32_bf16_dpp v{O+2*r+1}, v{phi}, v{R_(k)+r} row_newbcast:{4*BANK[j]}')
            refill(k)
    def merge_o():
        for e in range(4): A(f'v_permlane32_swap_b32 v{O+e}, v{O+4+e}')
        for e in range(4): A(f'v_add_f32 v{O+e}, v{O+e}, v{O+4+e}')
        for e in range(2): A(f'v_permlane16_swap_b32 v{O+e}, v{O+2+e}')
        for e in range(2): A(f'v_add_f32 v{O+e}, v{O+e}, v{O+2+e}')
    def write_ml(br):
        A(f'v_add_f32_dpp v{L}, v{L}, v{L} row_ror:4')
        A(f'v_add_f32_dpp v{L}, v{L}, v{L} row_ror:8')
        A(f'v_mov_b32 v{t0}, v{L}')
        A(f'v_permlane32_swap_b32 v{L}, v{t0}')
        A(f'v_add_f32 v{L}, v{L}, v{t0}')
        A(f'v_mov_b32 v{t0}, v{L}')
        A(f'v_permlane16_swap_b32 v{L}, v{t0}')
        A(f'v_add_f32 v{L}, v{L}, v{t0}')
        A(f's_lshl_b32 s38, {sw}, 3')
        A(f'v_mov_b32 v{t0}, s38')
        A(f'ds_write_b64 v{t0}, v[{M}:{L}] offset:{ML[br]}')
    def combine(br, T):
        A(f'v_and_b32 v{t1}, 127, v0')
        A(f'v_mov_b32 v{t0}, 0')
        A(f'v_lshlrev_b32 v{p}, 2, v{t1}')
        for k in range(2): A(f'ds_read_b128 v[{T+4*k}:{T+4*k+3}], v{t0} offset:{ML[br]+16*k}')
        for k in range(4): A(f'ds_read_b32 v{T+8+k}, v{p} offset:{ST[br]+512*k}')
        A(f'v_lshlrev_b32 v{t1}, 1, v{t1}')
        A('s_waitcnt lgkmcnt(4)')
        A(f'v_max3_f32 v{t0}, v{T}, v{T+2}, v{T+4}')
        A(f'v_max_f32 v{t0}, v{t0}, v{T+6}')
        A(f'v_mul_f32 v{t0}, {sc}, v{t0}')
        for k in range(4): A(f'v_fma_f32 v{T+2*k}, v{T+2*k}, {sc}, -v{t0}')
        for k in range(4): A(f'v_exp_f32 v{T+2*k}, v{T+2*k}')
        A(f'v_mul_f32 v{t0}, v{T}, v{T+1}')
        for k in range(1, 4): A(f'v_fmac_f32 v{t0}, v{T+2*k}, v{T+2*k+1}')
        A(f'v_rcp_f32 v{t0}, v{t0}')
        A('s_waitcnt lgkmcnt(0)')
        A(f'v_mul_f32 v{p}, v{T}, v{T+8}')
        for k in range(1, 4): A(f'v_fmac_f32 v{p}, v{T+2*k}, v{T+8+k}')
        A(f'v_mul_f32 v{p}, v{p}, v{t0}')
        A(f'v_cvt_pk_bf16_f32 v{p}, v{p}, v{p}')
        A(f'ds_write_b16 v{t1}, v{p} offset:{OB[br]}')
    def o_read(br, T):
        A(f'v_lshrrev_b32 v{t0}, 8, v{vKV}')
        A(f'v_lshlrev_b32 v{t0}, 6, v{t0}')
        for t in range(8):
            A(f's_lshl_b32 s38, s{STG+t}, 3')
            A(f'v_add_u32 v{t1 if t & 1 else p}, s38, v{t0}')
            A(f'ds_read_b64 v[{T+2*t}:{T+2*t+1}], v{t1 if t & 1 else p} offset:{OB[br]}')
    def wo_load(br, i):
        rg, ch = i >> 1, i & 1
        if i == 0:
            base(sW, PWO[br])
            A(f's_lshl_b32 s38, {sh}, 18')
            A(f's_lshl_b32 s39, {sw}, 9')
            A('s_add_u32 s39, s39, s38')
        if i % 8 == 0:
            A(f's_lshl_b32 {swo}, s{STG + i//8}, 13')
            A(f's_add_u32 {swo}, {swo}, s39')
        A.cap(58)
        A(f'buffer_load_dwordx4 a[{4*i}:{4*i+3}], v{vWO}, {sW}, {swo} offen offset:{(rg&1)*2048 + 256*ch} {w0pol if i < 8 else wpol}', tag=('wo', br, i))
        if i % 4 == 3: A(f's_add_u32 {swo}, {swo}, 4096')
    def o_mfma(rg, T, acc):
        fr = FR[rg & 1]
        for r in range(4):
            A(f'v_perm_b32 v{fr+r}, v{T+(rg>>1)}, v{T+(rg>>1)}, v{SEL+2*r+(rg&1)}')
        for ch in range(2):
            i = 2 * rg + ch
            c = '0' if rg == 0 else f'v[{acc[ch]}:{acc[ch]+3}]'
            A(f'v_mfma_f32_16x16x32_bf16 v[{acc[ch]}:{acc[ch]+3}], v[{fr}:{fr+3}], a[{4*i}:{4*i+3}], {c}')
    qld = {}; qmm = {}; ald = {}; bld = {}
    for i in range(64):
        h_ = 0 if i < 8 else QS + int((i - 8) / QR)
        qld.setdefault(h_, []).append(i)
        qmm.setdefault(max(h_ + 3, QS), []).append(i)
        ha = AS + int(i / AR); assert ha > max(h_ + 3, QS) - 1 and ha + 2 <= 137 + i // 4
        ald.setdefault(ha, []).append(i)
        hbb = 128 + BS + int(i / BR); assert hbb >= 137 + i // 4 and hbb < 250
        bld.setdefault(hbb, []).append(i)
    QE = max(qmm) + 1
    assert QE + 4 < 128 and AS > max(qld) and max(ald) < min(bld)
    def extras(hb):
        for i in qld.get(hb, []):
            A.cap(58); wq_load(1, i)
        if hb == QS: A.waitvm(('x', 1))
        for i in qmm.get(hb, []): q_mfma(1, i)
        if hb == QE: q_write(1)
        if hb == QE + 4:
            A('s_waitcnt lgkmcnt(0)')
            A('s_barrier')
            q_read(1, TQ, QB)
        for i in ald.get(hb, []): wo_load(0, i)
        for i in bld.get(hb, []): wo_load(1, i)
    base(sW, PWQ[1]); base(sX, PX[1])
    if now: A('s_mov_b32 s26, 0')
    A(f'v_lshrrev_b32 v{t0}, 8, v{vKV}')
    A(f'v_lshlrev_b32 v{t0}, 7, v{t0}')
    x_loads(1, t0)
    for hb in range(64):
        kblock(hb)
        pace(hb)
        extras(hb)
        if hb == 10:
            A(f's_lshl_b32 s38, {sb}, 2')
            A(f'v_mov_b32 v{PC+2}, s38')
            def body():
                A(f'global_load_dword v{PC+1}, v{PC+2}, {sdbg} sc1'); A.vm.pop()
            wave0('g', body)
        if hb == 20:
            def body():
                A.label('L_go')
                A(f'v_cmp_eq_u32 vcc, 0, v{PC+1}')
                A('s_cbranch_vccz L_gone')
                A(f'global_load_dword v{PC+1}, v{PC+2}, {sdbg} sc1'); A.vm.pop()
                A(f's_sub_u32 {sspin}, {sspin}, 1')
                A(f's_cmp_eq_u32 {sspin}, 0')
                A('s_cbranch_scc1 L_bail')
                A('s_waitcnt vmcnt(0)')
                A('s_branch L_go')
                A.label('L_bail')
                A('s_endpgm')
                A.label('L_gone')
                post(1)
            wave0('h', body)
            A(f'v_and_b32 v{PC}, 0x70, v{vKV}')
            A(f'v_lshrrev_b32 v{PC+2}, 7, v{vKV}')
            A(f'v_lshlrev_b32 v{PC}, 3, v{PC}')
            A(f'v_lshl_add_u32 v{PC}, v{PC+2}, 13, v{PC}')
            A('s_mov_b64 vcc, -1' if L3 else 's_mov_b64 vcc, 0')
            A('s_mov_b32 s95, 1')
    stamp(2)
    wave_max()
    for hb in range(64, 128):
        vblock(hb); pace(hb); extras(hb)
    stamp(3)
    write_ml(0)
    merge_o()
    A(f'ds_write_b64 v{vST}, v[{O}:{O+1}] offset:{ST[0]}')
    for r in range(4): A(f'v_mov_b32 v{Q+r}, v{QB+r}')
    for hb in range(128, 192):
        kblock(hb); pace(hb)
        n = hb - 128
        if n == 5:
            A('s_waitcnt lgkmcnt(0)')
            A('s_barrier')
            combine(0, XD)
        if n == 8:
            A('s_waitcnt lgkmcnt(0)')
            A('s_barrier')
            o_read(0, XD)
        if 9 <= n < 25:
            if n == 9: A('s_waitcnt lgkmcnt(0)')
            A.waitvm(('wo', 0, 4 * (n - 9) + 3))
            for k in range(2): o_mfma(2 * (n - 9) + k, XD, ACC)
        extras(hb)
        if n == 56:
            A(f'v_lshrrev_b32 v{PN}, 7, v{vKV}')
            A(f'v_and_b32 v{PN}, 3, v{PN}')
            A(f'v_lshlrev_b32 v{PN}, 13, v{PN}')
            A(f'v_and_b32 v{PN+1}, 0x70, v{vKV}')
            A(f'v_lshl_add_u32 v{PN}, v{PN+1}, 3, v{PN}')
            A(f's_lshl_b32 s37, {sb}, 10')
            A(f's_add_u32 s37, s37, {WS_FL}')
            def body():
                A(f'buffer_load_dword v{PN+1}, v{PN}, {sP}, s37 offen sc1'); A.vm.pop()
            wave0('f', body)
    stamp(4)
    wave_max()
    for hb in range(192, 256):
        vblock(hb)
        pace(hb); extras(hb)
        if hb == 200:
            def body():
                A('s_mov_b64 s[60:61], vcc')
                A.label('L_rdy')
                A(f'v_cmp_eq_u32 vcc, 0, v{PN+1}')
                A('s_cbranch_vccz L_rdyok')
                A(f'buffer_load_dword v{PN+1}, v{PN}, {sP}, s37 offen sc1'); A.vm.pop()
                A(f's_sub_u32 {sspin}, {sspin}, 1')
                A(f's_cmp_eq_u32 {sspin}, 0')
                A('s_cbranch_scc1 L_end')
                A('s_waitcnt vmcnt(0)')
                A('s_branch L_rdy')
                A.label('L_rdyok')
                A('s_mov_b64 vcc, s[60:61]')
            wave0('r', body)
    assert not A.vm
    stamp(5)
    T = RING
    merge_o()
    A(f'ds_write_b64 v{vST}, v[{O}:{O+1}] offset:{ST[1]}')
    write_ml(1)
    A('s_waitcnt lgkmcnt(0)')
    A('s_barrier')
    combine(1, T)
    A(f'v_lshrrev_b32 v5, 4, v{vKV}')
    A('v_and_b32 v7, 15, v5')
    A('v_lshrrev_b32 v6, 4, v5')
    A('v_lshrrev_b32 v9, 2, v7')
    A('v_lshlrev_b32 v9, 13, v9')
    A('v_and_b32 v8, 3, v7')
    A('v_lshl_add_u32 v9, v8, 5, v9')
    A('v_lshl_add_u32 v9, v6, 4, v9')
    A(f's_lshl_b32 s37, {sb}, 18')
    A(f's_lshl_b32 s38, {sw}, 16')
    A('s_add_u32 s37, s37, s38')
    A(f's_lshl_b32 s38, {sh}, 7')
    A('s_add_u32 s37, s37, s38')
    A('s_add_u32 s39, s37, 32768')
    A('s_mov_b64 exec, 0xffffffff')
    A(f'buffer_store_dwordx4 v[{ACC[0]}:{ACC[0]+3}], v9, {sP}, s37 offen sc1')
    A(f'buffer_store_dwordx4 v[{ACC[1]}:{ACC[1]+3}], v9, {sP}, s39 offen sc1')
    A('s_mov_b64 exec, -1')
    A('s_add_u32 s37, s37, 4096')
    A('s_add_u32 s39, s39, 4096')
    A('s_waitcnt lgkmcnt(0)')
    A('s_barrier')
    o_read(1, T)
    ACB = [T + 16, T + 20]
    for rg in range(32):
        if rg % 4 == 0: A(f's_waitcnt lgkmcnt({7 - rg//4})')
        o_mfma(rg, T, ACB)
    A('s_mov_b64 exec, 0xffffffff')
    A(f'buffer_store_dwordx4 v[{ACB[0]}:{ACB[0]+3}], v9, {sP}, s37 offen sc1')
    A(f'buffer_store_dwordx4 v[{ACB[1]}:{ACB[1]+3}], v9, {sP}, s39 offen sc1')
    A('s_mov_b64 exec, -1')
    stamp(6)
    A(f's_cmp_gt_u32 {sw}, 1')
    A(f's_cbranch_scc1 {"L_stamp" if stamps else "L_end"}')
    T = RING + 32
    A(f's_lshl_b32 s38, {sw}, 12')
    A(f's_sub_u32 s37, {sinb}, s38')
    A('s_add_u32 s37, s37, 4096')
    A(f's_mov_b32 {smask}, 15')
    A.label('L_poll')
    for k in range(4):
        A(f's_bitcmp1_b32 {smask}, {k}')
        A(f's_cbranch_scc0 L_skipld{k}')
        A(f'buffer_load_dwordx4 v[{T+4*k}:{T+4*k+3}], v{vKV}, {sP}, s37 offen offset:{k*1024} sc1')
        A.label(f'L_skipld{k}')
    A('s_waitcnt vmcnt(0)')
    A.vm = []
    A(f's_mov_b32 {smask}, 0')
    for k in range(4):
        A(f'v_max3_u32 v10, v{T+4*k}, v{T+4*k+1}, v{T+4*k+2}')
        A(f'v_max_u32 v10, v10, v{T+4*k+3}')
        A('v_cmp_eq_u32 vcc, -1, v10')
        A('s_cmp_lg_u64 vcc, 0')
        A(f's_cselect_b32 s38, {1<<k}, 0')
        A(f's_or_b32 {smask}, {smask}, s38')
    A(f's_cmp_eq_u32 {smask}, 0')
    A('s_cbranch_scc1 L_sum')
    if slp: A(f's_sleep {slp}')
    A(f's_sub_u32 {sspin}, {sspin}, 1')
    A(f's_cmp_lg_u32 {sspin}, 0')
    A('s_cbranch_scc1 L_poll')
    A('s_branch L_end')
    A.label('L_sum')
    for st in (8, 4):
        for k in range(st): A(f'v_add_f32 v{T+k}, v{T+k}, v{T+st+k}')
    for e in range(4): A(f'v_add_f32_dpp v{T+e}, v{T+e}, v{T+e} row_ror:8')
    for e in range(2): A(f'v_permlane32_swap_b32 v{T+e}, v{T+2+e}')
    for e in range(2): A(f'v_add_f32 v{T+e}, v{T+e}, v{T+2+e}')
    for e in range(2): A(f'v_mov_b32 v{T+2+e}, v{T+e}')
    for e in range(2): A(f'v_permlane16_swap_b32 v{T+e}, v{T+2+e}')
    for e in range(2): A(f'v_add_f32 v{T+e}, v{T+e}, v{T+2+e}')
    A(f'v_cvt_pk_bf16_f32 v{T}, v{T}, v{T+1}')
    A('v_and_b32 v10, 7, v5')
    A('v_lshrrev_b32 v11, 5, v5')
    A('v_lshlrev_b32 v10, 3, v10')
    A('v_lshl_add_u32 v10, v11, 2, v10')
    A(f's_lshl_b32 s37, {sb}, 12')
    A(f's_lshl_b32 s38, {sh}, 6')
    A('s_add_u32 s37, s37, s38')
    A(f's_xor_b32 s38, {sw}, 1')
    A('s_lshl_b32 s38, s38, 11')
    A('s_add_u32 s37, s37, s38')
    A('s_mov_b32 exec_lo, 0xff'); A('s_mov_b32 exec_hi, 0xff')
    A(f'buffer_store_dword v{T}, v10, {sOut}, s37 offen')
    if pad:
        A.label('L_pad')
        A('s_memrealtime s[60:61]')
        A('s_waitcnt lgkmcnt(0)')
        A('s_sub_u32 s60, s60, s62')
        A(f's_cmp_lt_u32 s60, {pad}')
        A('s_cbranch_scc1 L_pad')
    if stamps:
        A('s_mov_b64 exec, -1')
        A.label('L_stamp')
        A('s_lshl_b32 s37, s2, 2')
        stamp(7)
        A(f's_add_u32 s37, s37, {sw}')
        A('s_lshl_b32 s37, s37, 6')
        A('s_add_u32 s37, s37, 0x4000000')
        A('v_mov_b32 v4, s37')
        for k in range(8):
            A(f'v_mov_b32 v{8+2*k}, s{STS[k]}'); A(f'v_mov_b32 v{9+2*k}, 0')
        for k in range(4): A(f'global_store_dwordx4 v4, v[{8+4*k}:{11+4*k}], s[20:21] offset:{16*k}')
    A.label('L_end')
    A('s_endpgm')
    A.raw('.section .rodata,"a"')
    A.raw('.p2align 6')
    A.raw(f'.amdhsa_kernel {KN}')
    for l in ('next_free_vgpr 512', 'next_free_sgpr 102', 'accum_offset 256', 'group_segment_fixed_size 0', 'kernarg_size 104',
              'user_sgpr_count 2', 'user_sgpr_kernarg_segment_ptr 1', 'system_sgpr_workgroup_id_x 1'):
        A.raw('  .amdhsa_' + l)
    A.raw('.end_amdhsa_kernel')
    return A.text()

if __name__ == '__main__':
    for spec in sys.argv[1:]:
        kw = {}
        for kv in spec.split(','):
            if not kv or kv == 'x': continue
            k, v = kv.split('=')
            kw[k] = int(v) if v.lstrip('-').isdigit() else (float(v) if v.replace('.', '').isdigit() else v.replace('+', ' ').replace('none', ''))
        name = 'k9_' + spec.replace('=', '').replace(',', '_').replace('+', '') + '.s'
        open(name, 'w').write(gen(**kw))
        print(name)
```

```python
import sys, math, struct, copy
from asmlib import Asm
KN = 'concat_heads__mha_block_cached__mha_block_cached__decode_kernel'
def f2u(x): return struct.unpack('<I', struct.pack('<f', x))[0]

DOC = """; One workgroup (4 waves, one per SIMD) per (batch b, head h); it serves both branches.
"""

def gen(kvpol='nt', wpol='', stamps=0, pst=0, N=6, R1=4, WIN=32, late=12, slp=2, rot=5,
        QS=10, QR=1.0, AS=70, AR=1.0, BS=12, BR=1.0, DL=1, CP=14, RK=5, C0=32, NP=8, C1=250, hc='34012',
        alt=1, RB=28, NA=10, CA=36, ab=0, HJ=12, NB=0, NE=0, HE=248, DE=0, sp=1, dbg=0, CB=4, cpos=0, pad=0, header=''):
    A = Asm()
    QR, AR, BR = float(QR), float(AR), float(BR)
    QP = [0, 2048]; ST = [4096, 6144]; ML = [8192, 8224]; OB = 8256; MD = 8512
    LDS = MD + 16
    WS_FL = 0x200000; WS_RD = 0x208000; WS_END = 0x210000
    A.raw(header + f'; @launch grid=(256,1,1) block=(256,1,1) lds={LDS}')
    if stamps: A.raw(f'; STAMPS 1024 8 {0x4000000}')
    A.raw(DOC.rstrip('\n'))
    A.raw('.amdgcn_target "amdgcn-amd-amdhsa--gfx950"')
    A.raw('.text')
    A.raw(f'.globl {KN}')
    A.raw('.p2align 8')
    A.raw(f'.type {KN},@function')
    A.label(KN)
    vKV, vWQ, vWO = 1, 2, 3
    Q, QB = 4, 8; PN = 8
    O = 12; M = 20; L = 21
    a = [22, 23, 24, 25]; t0, t1, p, mx, plo, phi = 26, 27, 28, 29, 30, 31
    vCL, vGO, vMD, vST = 32, 33, 35, 36
    SEL = 40; FR = [48, 52]; ACC = [56, 60]
    RING = 64; XD = [224, 128]; TQ = 160; SC = 192
    R_ = lambda k: RING + 4 * (k if k < 32 else k % 16)
    KV = ['s[4:7]', 's[8:11]', 's[12:15]', 's[16:19]']
    sP, sW, sX, sOut = 's[20:23]', 's[24:27]', 's[28:31]', 's[32:35]'
    sw, sh, sb, sx, soff, spos, sub, sc = 's64', 's65', 's66', 's67', 's68', 's69', 's70', 's71'
    swb, swo = 's72', 's73'; STG = 74
    sdbg = 's[82:83]'; sinb, sspin, sflo, swob, smask = 's86', 's87', 's88', 's84', 's85'
    PX, PWQ, PWO = [40, 50], [46, 56], [48, 58]
    SL = list(range(40, 48)) + list(range(50, 58))
    STS = [3, 36, 89, 90, 91, 92, 93, 2]
    def stamp(i, force=False):
        if stamps and (force or not pst or i == 7):
            A('s_memrealtime s[60:61]')
            A('s_waitcnt lgkmcnt(0)')
            A(f's_mov_b32 s{STS[i]}, s60')
    def pstamp(i):
        if pst: stamp(i, True)
    def base(srd, ptr):
        r = int(srd[2:srd.index(':')])
        A(f's_mov_b32 s{r}, s{ptr}'); A(f's_mov_b32 s{r+1}, s{ptr+1}')
    def only(w, tagl, body):
        A(f's_cmp_eq_u32 {sw}, {w}')
        A(f's_cbranch_scc0 L_w{tagl}')
        body()
        A.label(f'L_w{tagl}')
    def countdown(target):
        A(f's_sub_u32 {sspin}, {sspin}, 1')
        A(f's_cmp_eq_u32 {sspin}, 0')
        A(f's_cbranch_scc1 {target}')
    A('s_cmp_ge_u32 s2, 256')
    A('s_cbranch_scc0 L_start')
    A.label('L_bail')
    A('s_endpgm')
    A.label('L_start')
    A('s_load_dwordx16 s[40:55], s[0:1], 0')
    A('s_load_dwordx4 s[56:59], s[0:1], 64')
    A('s_load_dwordx2 s[20:21], s[0:1], 96')
    A('s_load_dwordx2 s[32:33], s[0:1], 80')
    A('s_load_dwordx2 s[82:83], s[0:1], 88')
    if stamps: A('s_memrealtime s[60:61]')
    if pad: A('s_memrealtime s[62:63]')
    A('v_lshrrev_b32 v4, 6, v0')
    A('v_and_b32 v5, 63, v0')
    A(f'v_readfirstlane_b32 {sw}, v4')
    A('v_lshrrev_b32 v6, 4, v5')
    A('v_and_b32 v7, 15, v5')
    A(f'v_lshlrev_b32 v{vKV}, 4, v5')
    A('v_lshlrev_b32 v8, 4, v7')
    A(f'v_lshl_add_u32 v{vWQ}, v6, 19, v8')
    A(f'v_lshl_add_u32 v{vWO}, v6, 16, v8')
    A('v_lshlrev_b32 v9, 7, v6')
    A(f's_and_b32 {sx}, s2, 7')
    A('s_lshr_b32 s37, s2, 3')
    A(f's_and_b32 {sb}, s37, 7')
    A('s_lshr_b32 s37, s2, 6')
    A(f's_lshl_b32 s38, {sx}, 2')
    A(f's_or_b32 {sh}, s37, s38')
    for r, n in ((6, 0x10000000), (10, 0x10000000), (14, 0x10000000), (18, 0x10000000), (22, WS_END), (26, 0x800000), (30, 16384), (34, 32768)):
        A(f's_mov_b32 s{r}, {hex(n)}')
        A(f's_mov_b32 s{r+1}, 0x20000')
    A(f's_lshl_b32 s37, {sw}, 21')
    A(f's_lshl_b32 s38, {sh}, 8')
    A(f's_add_u32 {swb}, s37, s38')
    for t in range(8):
        A(f's_add_u32 s38, {sb}, {t}')
        A(f's_and_b32 s{STG+t}, s38, 7')
    A(f's_lshl_b32 {sub}, {sb}, 25')
    A(f's_lshl_b32 s38, {sh}, 20')
    A(f's_add_u32 {sub}, {sub}, s38')
    if rot == 5: A(f's_lshl_b32 s38, {sb}, 17')
    elif rot == 1:
        A('s_and_b32 s38, s2, 63'); A('s_lshl_b32 s38, s38, 14')
    else: A('s_mov_b32 s38, 0')
    A(f's_lshl_b32 {spos}, {sw}, 12')
    A(f's_add_u32 {spos}, {spos}, s38')
    A(f's_add_u32 {soff}, {spos}, {sub}')
    A('s_waitcnt lgkmcnt(0)')
    if stamps: A(f's_mov_b32 s{STS[0]}, s60')
    base(sW, PWQ[0]); base(sX, PX[0]); base(KV[0], 42)
    def wq_load(br, jj):
        if jj % 8 == 0:
            A(f's_lshl_b32 {swo}, s{STG + jj//8}, 16')
            A(f's_add_u32 {swo}, {swo}, {swb}')
        A(f'buffer_load_dwordx4 a[{4*jj}:{4*jj+3}], v{vWQ}, {sW}, {swo} offen {wpol}', tag=('wq', br, jj))
        if jj % 8 != 7: A(f's_add_u32 {swo}, {swo}, 8192')
    def x_loads(br, vaddr):
        A(f's_lshl_b32 s37, {sb}, 11')
        A(f's_lshl_b32 s38, {sw}, 9')
        A('s_add_u32 s37, s37, s38')
        for t in range(8):
            A(f's_lshl_b32 s38, s{STG+t}, 4')
            A('s_add_u32 s38, s38, s37')
            A(f'buffer_load_dwordx4 v[{XD[br]+4*t}:{XD[br]+4*t+3}], v{vaddr}, {sX}, s38 offen', tag=('x', br))
    nxt = [0]
    def kv_load():
        k = nxt[0]; nxt[0] += 1
        r = R_(k)
        A(f'buffer_load_dwordx4 v[{r}:{r+3}], v{vKV}, {KV[k >> 8]}, {soff} offen offset:{1024*(k&3)} {kvpol}', tag=('kv', k))
        if k & 3 == 3 and k != 1023:
            A(f's_add_u32 {spos}, {spos}, 0x4000')
            A(f's_and_b32 {spos}, {spos}, 0xfffff')
            A(f's_add_u32 {soff}, {spos}, {sub}')
    for jj in range(8): wq_load(0, jj)
    pstamp(1)
    x_loads(0, 9)
    for _ in range(R1): kv_load()
    pstamp(2)
    base(KV[1], 44); base(KV[2], 52); base(KV[3], 54)
    A(f's_mov_b32 {sspin}, 0x80000')
    A(f's_lshl_b32 s38, {sb}, 5')
    A(f's_add_u32 s38, s38, {sh}')
    A(f's_lshl_b32 {sinb}, s38, 13')
    A(f'v_lshlrev_b32 v{vCL}, 4, v0')
    for k in range(4): A(f'v_mov_b32 v{12+k}, -1')
    def clear_inbox():
        A(f'buffer_store_dwordx4 v[12:15], v{vCL}, {sP}, {sinb} offen sc1', tag='clr')
        A(f's_add_u32 s38, {sinb}, 4096')
        A(f'buffer_store_dwordx4 v[12:15], v{vCL}, {sP}, s38 offen sc1', tag='clr')
    if not dbg & 32 and cpos == 0: clear_inbox()
    A(f's_lshl_b32 s38, {sw}, 3')
    A(f's_add_u32 s38, s38, {sb}')
    A('s_lshl_b32 s38, s38, 10')
    A(f's_add_u32 s38, s38, {WS_FL}')
    A(f's_cmp_eq_u32 {sh}, 0')
    A('s_cselect_b32 s38, s38, 0x40000000')
    for k in range(4): A(f'v_mov_b32 v{16+k}, 0')
    A(f'buffer_store_dwordx4 v[16:19], v{vKV}, {sP}, s38 offen sc1', tag='clr')
    A(f's_add_u32 s38, s38, {WS_RD - WS_FL}')
    A(f'buffer_store_dwordx4 v[16:19], v{vKV}, {sP}, s38 offen sc1', tag='clr')
    A(f'ds_write_b32 v16, v16 offset:{MD}')
    A('s_lshl_b32 s38, s2, 7')
    A(f's_add_u32 {sflo}, s38, {WS_FL}')
    A(f's_mov_b32 {sc}, {hex(f2u(math.log2(math.e) / math.sqrt(128.0)))}')
    A('v_and_b32 v10, 7, v7')
    A('v_lshrrev_b32 v11, 1, v10')
    A('v_and_b32 v10, 1, v10')
    A('v_cmp_eq_u32 vcc, 1, v10')
    A('v_mov_b32 v20, 0x0c0c0100'); A('v_mov_b32 v21, 0x01000c0c')
    A('v_cndmask_b32 v22, v20, v21, vcc')
    A('v_mov_b32 v20, 0x0c0c0302'); A('v_mov_b32 v21, 0x03020c0c')
    A('v_cndmask_b32 v23, v20, v21, vcc')
    A('v_mov_b32 v20, 0x0c0c0c0c')
    for r in range(4):
        A(f'v_cmp_eq_u32 vcc, {r}, v11')
        A(f'v_cndmask_b32 v{SEL+2*r}, v20, v22, vcc')
        A(f'v_cndmask_b32 v{SEL+2*r+1}, v20, v23, vcc')
    A(f's_lshl_b32 s38, {sw}, 9')
    A(f'v_lshlrev_b32 v{vST}, 3, v6')
    A(f'v_lshl_add_u32 v{vST}, v7, 5, v{vST}')
    A(f'v_add_u32 v{vST}, s38, v{vST}')
    A(f'v_lshrrev_b32 v{vGO+1}, 2, v{vKV}')
    A(f'v_and_b32 v{vGO+1}, 28, v{vGO+1}')
    A('s_mov_b64 vcc, 0')
    def q_frag(br, jj):
        for r in range(4):
            A(f'v_perm_b32 v{FR[jj & 1]+r}, v{XD[br]+(jj>>1)}, v{XD[br]+(jj>>1)}, v{SEL+2*r+(jj&1)}')
    def q_mm(br, jj):
        A.waitvm(('wq', br, jj))
        c = '0' if jj == 0 else f'v[{ACC[0]}:{ACC[0]+3}]'
        A(f'v_mfma_f32_16x16x32_bf16 v[{ACC[0]}:{ACC[0]+3}], v[{FR[jj & 1]}:{FR[jj & 1]+3}], a[{4*jj}:{4*jj+3}], {c}')
    def q_write(br):
        A(f'v_lshrrev_b32 v{t0}, 8, v{vKV}')
        A(f'v_and_b32 v{t1}, 0xf0, v{vKV}')
        A(f'v_lshlrev_b32 v{t0}, 4, v{t0}')
        A(f'v_lshl_add_u32 v{t0}, v{t1}, 1, v{t0}')
        A(f's_lshl_b32 s38, {sw}, 9')
        A(f'v_add_u32 v{t0}, s38, v{t0}')
        A('s_mov_b64 exec, 0xffffffff')
        A(f'ds_write_b128 v{t0}, v[{ACC[0]}:{ACC[0]+3}] offset:{QP[br]}')
        A('s_mov_b64 exec, -1')
    def q_read(br, T, q):
        A(f'v_and_b32 v{t0}, 0xf0, v{vKV}')
        A(f'v_lshlrev_b32 v{t0}, 1, v{t0}')
        for hlf in range(2):
            for w in range(4):
                r = T + 16 * hlf + 4 * w
                A(f'ds_read_b128 v[{r}:{r+3}], v{t0} offset:{QP[br] + w*512 + 16*hlf}')
        for hlf in range(2):
            U = T + 16 * hlf
            A(f's_waitcnt lgkmcnt({4 - 4*hlf})')
            for e in range(0, 4, 2):
                A(f'v_pk_add_f32 v[{U+e}:{U+e+1}], v[{U+e}:{U+e+1}], v[{U+4+e}:{U+5+e}]')
                A(f'v_pk_add_f32 v[{U+8+e}:{U+9+e}], v[{U+8+e}:{U+9+e}], v[{U+12+e}:{U+13+e}]')
            for e in range(0, 4, 2): A(f'v_pk_add_f32 v[{U+e}:{U+e+1}], v[{U+e}:{U+e+1}], v[{U+8+e}:{U+9+e}]')
            for r in range(2): A(f'v_cvt_pk_bf16_f32 v{q+2*hlf+r}, v{U+2*r}, v{U+2*r+1}')
    boost = [0, 0]
    def refill(k):
        free = k + 33 if k < 15 else max(48, k + 17)
        first = True
        Nk = N + (NE if k >= 4 * HE else 0); Dk = DL + (DE if k >= 4 * HE else 0)
        while nxt[0] < min(max(k + 1 + Nk, min(k + 1 + boost[0], boost[1])), free, 1024):
            if first and Dk and 4 * C0 + 16 <= k and ('kv', k + Dk) in A.vm:
                n = len(A.vm) - 1 - A.vm.index(('kv', k + Dk))
                A(f's_cbranch_vccz L_d{k}')
                A(f's_waitcnt vmcnt({n})')
                A.label(f'L_d{k}')
            first = False
            A.cap(58); kv_load()
    BANK = [0, 2, 1, 3]
    hooks = {}
    def hook(hb, j, f): hooks.setdefault((hb, j if sp else 3), []).append(f)
    def run_hooks(hb, j):
        for f in hooks.get((hb, j), []): f()
    def kblock(hb):
        n = hb & 63; u = SC + n
        for j in range(4):
            k = 4 * hb + j
            A.waitvm(('kv', k))
            for r in range(4):
                c = '0' if r == 0 else f'v{a[j]}'
                A(f'v_dot2_f32_bf16 v{a[j]}, v{R_(k)+r}, v{Q+r}, {c}')
            refill(k)
            if j < 3: run_hooks(hb, j)
        A(f'v_add_f32_dpp v{t0}, v{a[0]}, v{a[0]} row_ror:8 row_mask:0xf bank_mask:0x3')
        A(f'v_add_f32_dpp v{t1}, v{a[2]}, v{a[2]} row_ror:8 row_mask:0xf bank_mask:0x3')
        A(f'v_add_f32_dpp v{t0}, v{a[1]}, v{a[1]} row_ror:8 row_mask:0xf bank_mask:0xc')
        A(f'v_add_f32_dpp v{t1}, v{a[3]}, v{a[3]} row_ror:8 row_mask:0xf bank_mask:0xc')
        A(f'v_add_f32_dpp v{p}, v{t0}, v{t0} row_half_mirror row_mask:0xf bank_mask:0x5')
        A(f'v_add_f32_dpp v{p}, v{t1}, v{t1} row_half_mirror row_mask:0xf bank_mask:0xa')
        A(f'v_add_f32_dpp v{p}, v{p}, v{p} quad_perm:[1,0,3,2]')
        A(f'v_add_f32_dpp v{u}, v{p}, v{p} quad_perm:[2,3,0,1]')
        if n == 0: A(f'v_mov_b32 v{M}, v{u}')
        else: A(f'v_max_f32 v{M}, v{M}, v{u}')
        run_hooks(hb, 3)
    def across_rows(op, r):
        for swap in ('v_permlane32_swap_b32', 'v_permlane16_swap_b32'):
            A(f'v_mov_b32 v{t0}, v{r}')
            A(f'{swap} v{r}, v{t0}')
            A(f'{op} v{r}, v{r}, v{t0}')
    def wave_max():
        A(f'v_max_f32_dpp v{M}, v{M}, v{M} row_ror:4')
        A(f'v_max_f32_dpp v{M}, v{M}, v{M} row_ror:8')
        across_rows('v_max_f32', M)
        A(f'v_mul_f32 v{mx}, {sc}, v{M}')
        A(f'v_mov_b32 v{L}, 0')
        for e in range(8): A(f'v_mov_b32 v{O+e}, 0')
    def prob(n, dst):
        A(f'v_fma_f32 v{dst}, v{SC+n}, {sc}, -v{mx}')
        A(f'v_exp_f32 v{dst}, v{dst}')
    def vblock(hb, ready):
        n = hb & 63
        if not ready: prob(n, p)
        src = SC + n if ready else p
        A(f'v_cvt_pk_bf16_f32 v{plo}, v{src}, 0')
        A(f'v_cvt_pk_bf16_f32 v{phi}, 0, v{src}')
        if not ready: A(f'v_add_f32 v{L}, v{L}, v{p}')
        for j in range(4):
            k = 4 * hb + j
            A.waitvm(('kv', k))
            for r in range(4):
                A(f'v_dot2c_f32_bf16_dpp v{O+2*r}, v{plo}, v{R_(k)+r} row_newbcast:{4*BANK[j]}')
                A(f'v_dot2c_f32_bf16_dpp v{O+2*r+1}, v{phi}, v{R_(k)+r} row_newbcast:{4*BANK[j]}')
            refill(k)
            run_hooks(hb, j)
    def merge_o():
        for e in range(4): A(f'v_permlane32_swap_b32 v{O+e}, v{O+4+e}')
        for e in range(4): A(f'v_add_f32 v{O+e}, v{O+e}, v{O+4+e}')
        for e in range(2): A(f'v_permlane16_swap_b32 v{O+e}, v{O+2+e}')
        for e in range(2): A(f'v_add_f32 v{O+e}, v{O+e}, v{O+2+e}')
    def write_ml(br):
        A(f'v_add_f32_dpp v{L}, v{L}, v{L} row_ror:4')
        A(f'v_add_f32_dpp v{L}, v{L}, v{L} row_ror:8')
        across_rows('v_add_f32', L)
        A(f's_lshl_b32 s38, {sw}, 3')
        A(f'v_mov_b32 v{t0}, s38')
        A(f'ds_write_b64 v{t0}, v[{M}:{L}] offset:{ML[br]}')
    def weights(T, own=None):
        A(f'v_max3_f32 v{t0}, v{T}, v{T+2}, v{T+4}')
        A(f'v_max_f32 v{t0}, v{t0}, v{T+6}')
        A(f'v_mul_f32 v{t0}, {sc}, v{t0}')
        if own: A(f'v_fma_f32 v{own}, v{M}, {sc}, -v{t0}')
        for k in range(4): A(f'v_fma_f32 v{T+2*k}, v{T+2*k}, {sc}, -v{t0}')
        if own: A(f'v_exp_f32 v{own}, v{own}')
        for k in range(4): A(f'v_exp_f32 v{T+2*k}, v{T+2*k}')
        A(f'v_mul_f32 v{t0}, v{T}, v{T+1}')
        for k in range(1, 4): A(f'v_fmac_f32 v{t0}, v{T+2*k}, v{T+2*k+1}')
        A(f'v_rcp_f32 v{t0}, v{t0}')
    def wo_load(br, i):
        rg, ch = i >> 1, i & 1
        if i == 0:
            base(sW, PWO[br])
            A(f's_lshl_b32 s38, {sh}, 18')
            A(f's_lshl_b32 {swob}, {sw}, 9')
            A(f's_add_u32 {swob}, {swob}, s38')
        if i % 8 == 0:
            A(f's_lshl_b32 {swo}, s{STG + i//8}, 13')
            A(f's_add_u32 {swo}, {swo}, {swob}')
        A.cap(58)
        A(f'buffer_load_dwordx4 a[{4*i}:{4*i+3}], v{vWO}, {sW}, {swo} offen offset:{(rg&1)*2048 + 256*ch} {wpol}', tag=('wo', br, i))
        if i % 4 == 3: A(f's_add_u32 {swo}, {swo}, 4096')
    GS = TQ; vRD = TQ + 1; DU = TQ + 2; MK = TQ + 4
    def o_setup():
        for r in range(4): A(f'v_perm_b32 v{MK+r}, -1, -1, v{SEL+2*r}')
        A(f'v_lshrrev_b32 v{t1}, 4, v{vKV}')
        A(f's_lshl_b32 s38, s{STG}, 1')
        A(f'v_add_u32 v{t1}, s38, v{t1}')
        A(f'v_and_b32 v{t1}, 15, v{t1}')
        A(f'v_lshrrev_b32 v{vRD}, 8, v{vKV}')
        A(f'v_lshlrev_b32 v{vRD}, 7, v{vRD}')
        A(f'v_lshl_add_u32 v{vRD}, v{t1}, 3, v{vRD}')
    def o_frag(rg):
        for r in range(4):
            A(f'v_and_b32_dpp v{FR[rg & 1]+r}, v{DU + (rg & 1)}, v{MK+r} row_newbcast:{rg >> 1}')
    def o_mm(rg, acc):
        for ch in range(2):
            i = 2 * rg + ch
            c = '0' if rg == 0 else f'v[{acc[ch]}:{acc[ch]+3}]'
            A(f'v_mfma_f32_16x16x32_bf16 v[{acc[ch]}:{acc[ch]+3}], v[{FR[rg & 1]}:{FR[rg & 1]+3}], a[{4*i}:{4*i+3}], {c}')
    def pace(hb): pass
    def pace_(hb):
        if not DL or hb < C0 or hb > C1: return
        ph = (hb - C0) % CP; val = 2 + (hb - C0) // CP
        if ph == 0:
            def body():
                A(f's_mov_b32 s100, {val}')
                A(f's_atomic_umax s100, s[20:21], {sflo}')
                bit = 1 << (10 + int(str(hc)[(val - 2) % len(str(hc))]))
                if NP == 16:
                    A(f's_and_b32 s60, {sflo}, {hex(~(0x380 | bit) & 0xffffffff)}')
                    for k in range(16):
                        A(f's_add_u32 s38, s60, {128 * (k & 7) + bit * (k >> 3)}')
                        A(f's_load_dword s{SL[k]}, s[20:21], s38 glc')
                elif NP < 8:
                    ms = [[3, 5, 6, 7, 1, 2, 4], [1, 6, 4, 3, 7, 5, 2], [7, 2, 5, 4, 3, 6, 1]][val % 3]
                    for k in range(NP):
                        A(f's_xor_b32 s38, {sflo}, {hex((ms[k] << 7) | (bit if (k ^ val) & 1 else 0))}')
                        A(f's_load_dword s{SL[k]}, s[20:21], s38 glc')
                else:
                    A(f's_and_b32 s60, {sflo}, {hex(~0x380 & 0xffffffff)}')
                    A(f's_xor_b32 s61, s60, {bit}')
                    for k in range(8):
                        A(f's_add_u32 s38, {"s61" if (k ^ (k >> 1) ^ val) & 1 else "s60"}, {128 * k}')
                        A(f's_load_dword s{SL[k]}, s[20:21], s38 glc')
            only(val % 4, f'p{hb}', body)
        if ph == 2:
            def body():
                A('s_mov_b32 s101, 0')
                A('s_waitcnt lgkmcnt(0)')
                for k in range(NP):
                    A(f's_cmp_ge_u32 s{SL[k]}, {val}')
                    A('s_addc_u32 s101, s101, 0')
                A(f's_cmp_lt_u32 s101, {RK}')
                A('s_cselect_b32 s38, -1, 0')
                A(f'v_mov_b32 v{t0}, 0')
                A(f'v_mov_b32 v{t1}, s38')
                A(f'ds_write_b32 v{t0}, v{t1} offset:{MD}')
            only(val % 4, f'p{hb}', body)
        if ph == 3:
            A(f'v_mov_b32 v{t0}, 0')
            A(f'ds_read_b32 v{vMD}, v{t0} offset:{MD}')
        if ph == 4:
            A('s_waitcnt lgkmcnt(0)')
            A(f'v_cmp_ne_u32 vcc, 0, v{vMD}')
    qld = {}; qmm = {}; ald = {}; bld = {}
    for i in range(64):
        h_ = 0 if i < 8 else QS + int((i - 8) / QR)
        qld.setdefault(h_, []).append(i)
        qmm.setdefault(max(h_ + 3, QS + 1), []).append(i)
        ha = AS + int(i / AR); assert ha >= max(h_ + 3, QS + 1) and ha + 2 <= 129 + CB + i // 4
        ald.setdefault(ha, []).append(i)
        hbb = 128 + BS + int(i / BR); assert hbb >= 129 + CB + i // 4 and hbb < 250
        bld.setdefault(hbb, []).append(i)
    QE = max(qmm) + 1
    assert QE + 4 < 128 and AS > max(qld) and max(ald) < min(bld) and QS >= 9 and C0 > 24
    def extras(hb): pass
    for hb_ in range(256):
        hook(hb_, 0, lambda hb=hb_: pace_(hb))
        hook(hb_, 1, lambda hb=hb_: extras_(hb, 1))
        hook(hb_, 2, lambda hb=hb_: extras_(hb, 2))
        hook(hb_, 3, lambda hb=hb_: extras_(hb, 3))
    def extras_(hb, part):
        if part == 1:
            for i in qmm.get(hb, []):
                if hb == QS + 1 and i == qmm[hb][0]: A.waitvm(('x', 1))
                q_frag(1, i); q_mm(1, i)
            return
        if part == 2:
            if hb == 0: base(sW, PWQ[1]); base(sX, PX[1])
            for i in qld.get(hb, []):
                A.cap(58); wq_load(1, i)
            for i in ald.get(hb, []): wo_load(0, i)
            for i in bld.get(hb, []): wo_load(1, i)
            return
        if hb == 8:
            A(f'v_lshrrev_b32 v{t0}, 8, v{vKV}')
            A(f'v_lshlrev_b32 v{t0}, 7, v{t0}')
            x_loads(1, t0)
        if hb == QE: q_write(1)
        if hb == QE + 4:
            A('s_waitcnt lgkmcnt(0)')
            if not dbg & 8: A('s_barrier')
            q_read(1, TQ, QB)
    def extras_old(hb):
        if hb == 0: base(sW, PWQ[1]); base(sX, PX[1])
        for i in qld.get(hb, []):
            A.cap(58); wq_load(1, i)
        if hb == 8:
            A(f'v_lshrrev_b32 v{t0}, 8, v{vKV}')
            A(f'v_lshlrev_b32 v{t0}, 7, v{t0}')
            x_loads(1, t0)
        if hb == QS + 1: A.waitvm(('x', 1))
        for i in qmm.get(hb, []):
            q_frag(1, i); q_mm(1, i)
        if hb == QE: q_write(1)
        if hb == QE + 4:
            A('s_waitcnt lgkmcnt(0)')
            A('s_barrier')
            q_read(1, TQ, QB)
        for i in ald.get(hb, []): wo_load(0, i)
        for i in bld.get(hb, []): wo_load(1, i)
    def front(v, early, lt, bst):
        for _ in range(early): kv_load()
        rest = list(range(8, 64))
        pstamp(3)
        A.waitvm(('x', 0))
        pstamp(4)
        while rest and len(A.vm) < WIN + early: wq_load(0, rest.pop(0))
        pstamp(5)
        q_frag(0, 0)
        for jj in range(64):
            if jj < 63: q_frag(0, jj + 1)
            q_mm(0, jj)
            while rest and len(A.vm) < WIN: wq_load(0, rest.pop(0))
        pstamp(6)
        assert not rest and 'clr' not in A.vm
        if cpos == 1: clear_inbox()
        q_write(0)
        for _ in range(lt): kv_load()
        A('s_waitcnt lgkmcnt(0)')
        A('s_barrier')
        q_read(0, XD[0], Q)
        A(f's_or_b32 s38, {sw}, {sh}')
        A('s_cmp_eq_u32 s38, 0')
        A(f's_cbranch_scc0 L_nosig{v}')
        A(f's_lshl_b32 s38, {sb}, 2')
        A(f'v_mov_b32 v{t0}, s38')
        A(f'v_mov_b32 v{t1}, 1')
        A('s_mov_b64 exec, 1')
        A(f'global_store_dword v{t0}, v{t1}, {sdbg} sc1'); A.vm.pop()
        A('s_mov_b64 exec, -1')
        A.label(f'L_nosig{v}')
        stamp(1)
        boost[:] = bst
        for hb in range(HJ):
            kblock(hb); extras(hb)
        boost[:] = [0, 0]
    if alt:
        A(f's_bitcmp1_b32 s2, {3 + ab}')
        A('s_cbranch_scc1 L_frontB')
        vm0, n0 = list(A.vm), nxt[0]
        front('A', 0, late, [NA, CA])
        A('s_branch L_join')
        vmA, nA = list(A.vm), nxt[0]
        A.vm, nxt[0] = vm0, n0
        A.label('L_frontB')
        front('B', RB - R1, 32 - RB, [32, 32 + N + NB])
        assert A.vm == vmA and nxt[0] == nA, (A.vm, vmA)
        A.label('L_join')
        A('s_nop 1')
    else:
        front('A', 0, late, [32, R1 + late + N])
    for hb in range(HJ, 64):
        kblock(hb); pace(hb); extras(hb)
        if hb == 14:
            def body():
                A(f'global_load_dword v{vGO}, v{vGO+1}, {sdbg} sc1'); A.vm.pop()
            only(0, 'g', body)
        if hb == 20:
            def body():
                A.label('L_go')
                A(f'v_cmp_eq_u32 vcc, 0, v{vGO}')
                A('s_cbranch_vccz L_gone')
                A(f'global_load_dword v{vGO}, v{vGO+1}, {sdbg} sc1'); A.vm.pop()
                countdown('L_bail')
                A('s_waitcnt vmcnt(0)')
                A('s_branch L_go')
                A.label('L_gone')
            only(0, 'h', body)
        if hb == 24:
            assert 'clr' not in A.vm
            A('s_barrier')
            def body():
                A('s_mov_b32 s100, 1')
                A(f's_add_u32 s101, {sflo}, {WS_RD - WS_FL}')
                A('s_atomic_umax s100, s[20:21], s101')
            only(0, 'i', body)
    stamp(2)
    wave_max()
    for hb in range(64, 128):
        vblock(hb, False); pace(hb); extras(hb)
    stamp(3)
    write_ml(0)
    merge_o()
    A(f'ds_write_b64 v{vST}, v[{O}:{O+1}] offset:{ST[0]}')
    for r in range(4): A(f'v_mov_b32 v{Q+r}, v{QB+r}')
    for rg_ in range(32):
        def om(rg=rg_):
            A.waitvm(('wo', 0, 2 * rg + 1))
            if not dbg & 2: o_frag(rg); o_mm(rg, ACC)
        hooks.setdefault((129 + CB + rg_ // 2, (rg_ & 1) if sp else 3), []).insert(0, om) if sp else hook(129 + CB + rg_ // 2, 3, om)
    for hb in range(128, 192):
        kblock(hb); pace(hb)
        n = hb - 128
        if n == CB and not dbg & 4:
            T = XD[1]
            o_setup()
            A('s_waitcnt lgkmcnt(0)')
            if not dbg & 1: A('s_barrier')
            A(f'v_mov_b32 v{t0}, 0')
            for k in range(2): A(f'ds_read_b128 v[{T+4*k}:{T+4*k+3}], v{t0} offset:{ML[0]+16*k}')
            for k in range(4): A(f'ds_read_b64 v[{T+8+2*k}:{T+9+2*k}], v{vRD} offset:{ST[0]+512*k}')
            A('s_waitcnt lgkmcnt(4)')
            weights(T)
            A('s_waitcnt lgkmcnt(0)')
            for e in range(2):
                A(f'v_mul_f32 v{DU+e}, v{T}, v{T+8+e}')
                for k in range(1, 4): A(f'v_fmac_f32 v{DU+e}, v{T+2*k}, v{T+8+2*k+e}')
            for e in range(2): A(f'v_mul_f32 v{DU+e}, v{DU+e}, v{t0}')
            for e in range(2): A(f'v_cvt_pk_bf16_f32 v{DU+e}, v{DU+e}, v{DU+e}')
        extras(hb)
        if n == 56:
            A(f'v_lshrrev_b32 v{PN}, 7, v{vKV}')
            A(f'v_and_b32 v{PN}, 3, v{PN}')
            A(f'v_lshlrev_b32 v{PN}, 13, v{PN}')
            A(f'v_and_b32 v{PN+1}, 0x70, v{vKV}')
            A(f'v_lshl_add_u32 v{PN}, v{PN+1}, 3, v{PN}')
            A(f's_lshl_b32 s37, {sb}, 10')
            A(f's_add_u32 s37, s37, {WS_RD}')
            def body():
                A(f'buffer_load_dword v{PN+1}, v{PN}, {sP}, s37 offen sc1'); A.vm.pop()
            only(0, 'f', body)
    stamp(4)
    wave_max()
    for hb in range(192, 256):
        n = hb - 192
        if n == 0:
            prob(0, SC); A(f'v_add_f32 v{L}, v{L}, v{SC}')
        if n < 16:
            for j in range(4):
                m = 4 * n + j + 1
                if m < 64:
                    def cv(m=m):
                        prob(m, SC + m); A(f'v_add_f32 v{L}, v{L}, v{SC+m}')
                    hook(hb, j, cv)
        vblock(hb, True); pace(hb); extras(hb)
        if n == 8:
            def body():
                A('s_mov_b64 s[60:61], vcc')
                A.label('L_rdy')
                A(f'v_cmp_eq_u32 vcc, 0, v{PN+1}')
                A('s_cbranch_vccz L_rdyok')
                A(f'buffer_load_dword v{PN+1}, v{PN}, {sP}, s37 offen sc1'); A.vm.pop()
                countdown('L_end')
                A('s_waitcnt vmcnt(0)')
                A('s_branch L_rdy')
                A.label('L_rdyok')
                A('s_mov_b64 vcc, s[60:61]')
            only(0, 'r', body)
        if n == 16: write_ml(1)
        if n == 20:
            T = XD[1]
            A('s_waitcnt lgkmcnt(0)')
            if not dbg & 16: A('s_barrier')
            A(f'v_mov_b32 v{t0}, 0')
            for k in range(2): A(f'ds_read_b128 v[{T+4*k}:{T+4*k+3}], v{t0} offset:{ML[1]+16*k}')
            A(f'v_lshrrev_b32 v5, 4, v{vKV}')
            A('v_and_b32 v7, 15, v5')
            A('v_lshrrev_b32 v6, 4, v5')
            A('v_lshrrev_b32 v9, 2, v7')
            A('v_lshlrev_b32 v9, 13, v9')
            A('v_and_b32 v8, 3, v7')
            A('v_lshl_add_u32 v9, v8, 5, v9')
            A('v_lshl_add_u32 v9, v6, 4, v9')
            A(f's_lshl_b32 s96, {sb}, 18')
            A(f's_lshl_b32 s38, {sw}, 16')
            A('s_add_u32 s96, s96, s38')
            A(f's_lshl_b32 s38, {sh}, 7')
            A('s_add_u32 s96, s96, s38')
            A('s_add_u32 s97, s96, 32768')
            A('s_add_u32 s98, s96, 4096')
            A('s_add_u32 s99, s97, 4096')
            A('v_and_b32 v10, 7, v5')
            A('v_lshrrev_b32 v11, 5, v5')
            A('v_lshlrev_b32 v10, 3, v10')
            A('v_lshl_add_u32 v10, v11, 2, v10')
            A(f's_lshl_b32 s94, {sb}, 12')
            A(f's_lshl_b32 s38, {sh}, 6')
            A('s_add_u32 s94, s94, s38')
            A(f's_xor_b32 s38, {sw}, 1')
            A('s_lshl_b32 s39, s38, 11')
            A('s_add_u32 s94, s94, s39')
            A('s_lshl_b32 s38, s38, 12')
            A(f's_add_u32 s95, {sinb}, s38')
            A('s_waitcnt lgkmcnt(0)')
            weights(T, GS)
            A(f'v_mul_f32 v{GS}, v{GS}, v{t0}')
    assert not A.vm
    stamp(5)
    T = RING
    def publish(acc, s0, s1):
        A('s_mov_b64 exec, 0xffffffff')
        A(f'buffer_store_dwordx4 v[{acc[0]}:{acc[0]+3}], v9, {sP}, {s0} offen sc1')
        A(f'buffer_store_dwordx4 v[{acc[1]}:{acc[1]+3}], v9, {sP}, {s1} offen sc1')
        A('s_mov_b64 exec, -1')
    ACB = [T + 16, T + 20]
    merge_o()
    A(f'v_pk_mul_f32 v[{O}:{O+1}], v[{O}:{O+1}], v[{GS}:{GS+1}] op_sel_hi:[1,0]')
    A(f'ds_write_b64 v{vST}, v[{O}:{O+1}] offset:{ST[1]}')
    A('s_waitcnt lgkmcnt(0)')
    A('s_barrier')
    for k in range(4): A(f'ds_read_b64 v[{T+2*k}:{T+2*k+1}], v{vRD} offset:{ST[1]+512*k}')
    publish(ACC, 's96', 's97')
    A('s_waitcnt lgkmcnt(2)')
    A(f'v_pk_add_f32 v[{T}:{T+1}], v[{T}:{T+1}], v[{T+2}:{T+3}]')
    A('s_waitcnt lgkmcnt(0)')
    A(f'v_pk_add_f32 v[{T+4}:{T+5}], v[{T+4}:{T+5}], v[{T+6}:{T+7}]')
    A(f'v_pk_add_f32 v[{T}:{T+1}], v[{T}:{T+1}], v[{T+4}:{T+5}]')
    for e in range(2): A(f'v_cvt_pk_bf16_f32 v{DU+e}, v{T+e}, v{T+e}')
    o_frag(0)
    for rg in range(32):
        if rg < 31: o_frag(rg + 1)
        o_mm(rg, ACB)
    publish(ACB, 's98', 's99')
    stamp(6)
    A(f's_cmp_gt_u32 {sw}, 1')
    A(f's_cbranch_scc1 {"L_stamp" if stamps else "L_end"}')
    T = RING + 32
    A(f's_mov_b32 {smask}, 15')
    A.label('L_poll')
    for k in range(4):
        A(f's_bitcmp1_b32 {smask}, {k}')
        A(f's_cbranch_scc0 L_skipld{k}')
        A(f'buffer_load_dwordx4 v[{T+4*k}:{T+4*k+3}], v{vKV}, {sP}, s95 offen offset:{k*1024} sc1')
        A.label(f'L_skipld{k}')
    A('s_waitcnt vmcnt(0)')
    A.vm = []
    A(f's_mov_b32 {smask}, 0')
    for k in range(4):
        A(f'v_max3_u32 v11, v{T+4*k}, v{T+4*k+1}, v{T+4*k+2}')
        A(f'v_max_u32 v11, v11, v{T+4*k+3}')
        A('v_cmp_eq_u32 vcc, -1, v11')
        A('s_cmp_lg_u64 vcc, 0')
        A(f's_cselect_b32 s38, {1<<k}, 0')
        A(f's_or_b32 {smask}, {smask}, s38')
    A(f's_cmp_eq_u32 {smask}, 0')
    A('s_cbranch_scc1 L_sum')
    if slp: A(f's_sleep {slp}')
    countdown('L_end')
    A('s_branch L_poll')
    A.label('L_sum')
    for st in (8, 4):
        for k in range(0, st, 2): A(f'v_pk_add_f32 v[{T+k}:{T+k+1}], v[{T+k}:{T+k+1}], v[{T+st+k}:{T+st+k+1}]')
    for e in range(4): A(f'v_add_f32_dpp v{T+e}, v{T+e}, v{T+e} row_ror:8')
    for e in range(2): A(f'v_permlane32_swap_b32 v{T+e}, v{T+2+e}')
    for e in range(2): A(f'v_add_f32 v{T+e}, v{T+e}, v{T+2+e}')
    for e in range(2): A(f'v_mov_b32 v{T+2+e}, v{T+e}')
    for e in range(2): A(f'v_permlane16_swap_b32 v{T+e}, v{T+2+e}')
    for e in range(2): A(f'v_add_f32 v{T+e}, v{T+e}, v{T+2+e}')
    A(f'v_cvt_pk_bf16_f32 v{T}, v{T}, v{T+1}')
    A('s_mov_b32 exec_lo, 0xff'); A('s_mov_b32 exec_hi, 0xff')
    A(f'buffer_store_dword v{T}, v10, {sOut}, s94 offen')
    if pad:
        A.label('L_pad')
        A('s_memrealtime s[60:61]')
        A('s_waitcnt lgkmcnt(0)')
        A('s_sub_u32 s60, s60, s62')
        A(f's_cmp_lt_u32 s60, {pad}')
        A('s_cbranch_scc1 L_pad')
    if stamps:
        A('s_mov_b64 exec, -1')
        A.label('L_stamp')
        A('s_lshl_b32 s37, s2, 2')
        stamp(7)
        A(f's_add_u32 s37, s37, {sw}')
        A('s_lshl_b32 s37, s37, 6')
        A('s_add_u32 s37, s37, 0x4000000')
        A('v_mov_b32 v4, s37')
        for k in range(8):
            A(f'v_mov_b32 v{8+2*k}, s{STS[k]}'); A(f'v_mov_b32 v{9+2*k}, 0')
        for k in range(4): A(f'global_store_dwordx4 v4, v[{8+4*k}:{11+4*k}], s[20:21] offset:{16*k}')
    A.label('L_end')
    A('s_endpgm')
    A.raw('.section .rodata,"a"')
    A.raw('.p2align 6')
    A.raw(f'.amdhsa_kernel {KN}')
    for l in ('next_free_vgpr 512', 'next_free_sgpr 102', 'accum_offset 256', 'group_segment_fixed_size 0', 'kernarg_size 104',
              'user_sgpr_count 2', 'user_sgpr_kernarg_segment_ptr 1', 'system_sgpr_workgroup_id_x 1'):
        A.raw('  .amdhsa_' + l)
    A.raw('.end_amdhsa_kernel')
    return A.text()

if __name__ == '__main__':
    for spec in sys.argv[1:]:
        kw = {}
        for kv in spec.split(','):
            if not kv or kv == 'x': continue
            k, v = kv.split('=')
            kw[k] = int(v) if v.lstrip('-').isdigit() else (float(v) if v.replace('.', '').isdigit() else v.replace('+', ' ').replace('none', ''))
        name = 'k11_' + spec.replace('=', '').replace(',', '_').replace('+', '') + '.s'
        open(name, 'w').write(gen(**kw))
        print(name)
```

```python
import sys, math, struct, copy
from asmlib import Asm
KN = 'concat_heads__mha_block_cached__mha_block_cached__decode_kernel'
def f2u(x): return struct.unpack('<I', struct.pack('<f', x))[0]

DOC = """; One workgroup (4 waves, one per SIMD) per (batch b, head h); it serves both branches.
"""

def gen(kvpol='nt', wpol='', stamps=0, pst=0, N=6, R1=4, WIN=32, late=12, slp=2, rot=5,
        QS=10, QR=1.0, AS=70, AR=1.0, BS=12, BR=1.0, DL=1, CP=14, RK=5, C0=32, NP=8, C1=250, hc='34012',
        alt=1, RB=28, NA=10, CA=36, ab=0, HJ=14, NB=0, LB=4, NB3=10, CB3=48, RC=42, LC=3, NE=0, HE=248, DE=0, sp=1, dbg=0, CB=4, cpos=0, BP=1, B0=12, NL=20, BJ='1', pp=0, pad=0, header=''):
    A = Asm()
    QR, AR, BR = float(QR), float(AR), float(BR)
    QP = [0, 2048]; ST = [4096, 6144]; ML = [8192, 8224]; OB = 8256; MD = 8512
    LDS = MD + 16
    WS_FL = 0x200000; WS_RD = 0x208000; WS_END = 0x210000
    A.raw(header + f'; @launch grid=(256,1,1) block=(256,1,1) lds={LDS}')
    if stamps: A.raw(f'; STAMPS 1024 8 {0x4000000}')
    A.raw(DOC.rstrip('\n'))
    A.raw('.amdgcn_target "amdgcn-amd-amdhsa--gfx950"')
    A.raw('.text')
    A.raw(f'.globl {KN}')
    A.raw('.p2align 8')
    A.raw(f'.type {KN},@function')
    A.label(KN)
    vKV, vWQ, vWO = 1, 2, 3
    Q, QB = 4, 8; PN = 8
    O = 12; M = 20; L = 21
    a = [22, 23, 24, 25]; t0, t1, p, mx, plo, phi = 26, 27, 28, 29, 30, 31
    vCL, vGO, vMD, vST = 32, 33, 35, 36
    MK = 40; DX = 44; FR = [48, 52]; ACC = [56, 60]; vXA = 37; XR = 38
    RING = 64; XD = [224, 128]; TQ = 160; SC = 192
    def R_(k):
        return RING + 4 * k if k < 32 else (SC + 12 + 4 * (k - 32) if k < 45 else RING + 4 * (k % 16))
    KV = ['s[4:7]', 's[8:11]', 's[12:15]', 's[16:19]']
    sP, sW, sX, sOut = 's[20:23]', 's[24:27]', 's[28:31]', 's[32:35]'
    sw, sh, sb, sx, soff, spos, sub, sc = 's64', 's65', 's66', 's67', 's68', 's69', 's70', 's71'
    swb, swo = 's72', 's73'; STG = 74
    sdbg = 's[82:83]'; sinb, sspin, sflo, swob, smask = 's86', 's87', 's88', 's84', 's85'
    PX, PWQ, PWO = [40, 50], [46, 56], [48, 58]
    SL = list(range(40, 48)) + list(range(50, 58))
    STS = [3, 36, 89, 90, 91, 92, 93, 2]
    def stamp(i, force=False):
        if stamps and (force or not pst or i == 7):
            A('s_memrealtime s[60:61]')
            A('s_waitcnt lgkmcnt(0)')
            A(f's_mov_b32 s{STS[i]}, s60')
    def pstamp(i):
        if pst == 1: stamp(i, True)
    def base(srd, ptr):
        r = int(srd[2:srd.index(':')])
        A(f's_mov_b32 s{r}, s{ptr}'); A(f's_mov_b32 s{r+1}, s{ptr+1}')
    def only(w, tagl, body):
        A(f's_cmp_eq_u32 {sw}, {w}')
        A(f's_cbranch_scc0 L_w{tagl}')
        body()
        A.label(f'L_w{tagl}')
    def countdown(target):
        A(f's_sub_u32 {sspin}, {sspin}, 1')
        A(f's_cmp_eq_u32 {sspin}, 0')
        A(f's_cbranch_scc1 {target}')
    A('s_cmp_ge_u32 s2, 256')
    A('s_cbranch_scc0 L_start')
    A.label('L_bail')
    A('s_endpgm')
    A.label('L_start')
    A('s_load_dwordx16 s[40:55], s[0:1], 0')
    A('s_load_dwordx4 s[56:59], s[0:1], 64')
    A('s_load_dwordx2 s[20:21], s[0:1], 96')
    A('s_load_dwordx2 s[32:33], s[0:1], 80')
    A('s_load_dwordx2 s[82:83], s[0:1], 88')
    if stamps: A('s_memrealtime s[60:61]')
    if pad: A('s_memrealtime s[62:63]')
    A('v_lshrrev_b32 v4, 6, v0')
    A('v_and_b32 v5, 63, v0')
    A(f'v_readfirstlane_b32 {sw}, v4')
    A('v_lshrrev_b32 v6, 4, v5')
    A('v_and_b32 v7, 15, v5')
    A(f'v_lshlrev_b32 v{vKV}, 4, v5')
    A('v_lshlrev_b32 v8, 4, v7')
    A(f'v_lshl_add_u32 v{vWQ}, v6, 19, v8')
    A(f'v_lshl_add_u32 v{vWO}, v6, 16, v8')
    A(f's_and_b32 {sx}, s2, 7')
    A('s_lshr_b32 s37, s2, 3')
    A(f's_and_b32 {sb}, s37, 7')
    A('s_lshr_b32 s37, s2, 6')
    A(f's_lshl_b32 s38, {sx}, 2')
    A(f's_or_b32 {sh}, s37, s38')
    for r, n in ((6, 0x10000000), (10, 0x10000000), (14, 0x10000000), (18, 0x10000000), (22, WS_END), (26, 0x800000), (30, 16384), (34, 32768)):
        A(f's_mov_b32 s{r}, {hex(n)}')
        A(f's_mov_b32 s{r+1}, 0x20000')
    A(f's_lshl_b32 s37, {sw}, 21')
    A(f's_lshl_b32 s38, {sh}, 8')
    A(f's_add_u32 {swb}, s37, s38')
    for t in range(8):
        A(f's_add_u32 s38, {sb}, {t}')
        A(f's_and_b32 s{STG+t}, s38, 7')
    A(f's_lshl_b32 s38, {sb}, 1')
    A('v_add_u32 v9, s38, v7')
    A('v_and_b32 v9, 15, v9')
    A('v_lshlrev_b32 v9, 3, v9')
    A('v_lshl_add_u32 v9, v6, 7, v9')
    A(f's_lshl_b32 s37, {sb}, 11')
    A(f's_lshl_b32 s38, {sw}, 9')
    A('s_add_u32 s37, s37, s38')
    A(f'v_add_u32 v{vXA}, s37, v9')
    A(f's_lshl_b32 {sub}, {sb}, 25')
    A(f's_lshl_b32 s38, {sh}, 20')
    A(f's_add_u32 {sub}, {sub}, s38')
    if rot == 5: A(f's_lshl_b32 s38, {sb}, 17')
    elif rot == 1:
        A('s_and_b32 s38, s2, 63'); A('s_lshl_b32 s38, s38, 14')
    else: A('s_mov_b32 s38, 0')
    A(f's_lshl_b32 {spos}, {sw}, 12')
    A(f's_add_u32 {spos}, {spos}, s38')
    A(f's_add_u32 {soff}, {spos}, {sub}')
    A('s_waitcnt lgkmcnt(0)')
    if stamps: A(f's_mov_b32 s{STS[0]}, s60')
    base(sW, PWQ[0]); base(sX, PX[0]); base(KV[0], 42)
    def wq_load(br, jj):
        if jj % 8 == 0:
            A(f's_lshl_b32 {swo}, s{STG + jj//8}, 16')
            A(f's_add_u32 {swo}, {swo}, {swb}')
        A(f'buffer_load_dwordx4 a[{4*jj}:{4*jj+3}], v{vWQ}, {sW}, {swo} offen {wpol}', tag=('wq', br, jj))
        if jj % 8 != 7: A(f's_add_u32 {swo}, {swo}, 8192')
    def x_load(br):
        A(f'buffer_load_dwordx2 v[{XR}:{XR+1}], v{vXA}, {sX}, 0 offen', tag=('x', br))
    def x_dup(br):
        A.waitvm(('x', br))
        A('s_mov_b32 s38, 0x01000100'); A('s_mov_b32 s39, 0x03020302')
        for e in range(4): A(f'v_perm_b32 v{DX+e}, v{XR+(e>>1)}, v{XR+(e>>1)}, s{38+(e&1)}')
    nxt = [0]
    def kv_load():
        k = nxt[0]; nxt[0] += 1
        r = R_(k)
        A(f'buffer_load_dwordx4 v[{r}:{r+3}], v{vKV}, {KV[k >> 8]}, {soff} offen offset:{1024*(k&3)} {kvpol}', tag=('kv', k))
        if k & 3 == 3 and k != 1023:
            A(f's_add_u32 {spos}, {spos}, 0x4000')
            A(f's_and_b32 {spos}, {spos}, 0xfffff')
            A(f's_add_u32 {soff}, {spos}, {sub}')
    for jj in range(8): wq_load(0, jj)
    pstamp(1)
    x_load(0)
    for _ in range(R1): kv_load()
    pstamp(2)
    base(KV[1], 44); base(KV[2], 52); base(KV[3], 54)
    for k in range(4): A(f'v_mov_b32 v{16+k}, 0')
    A(f's_cmp_eq_u32 {sh}, 0')
    A('s_cbranch_scc0 L_nozero')
    A(f's_lshl_b32 s38, {sw}, 3')
    A(f's_add_u32 s38, s38, {sb}')
    A('s_lshl_b32 s38, s38, 10')
    A(f's_add_u32 s38, s38, {WS_FL}')
    A(f'buffer_store_dwordx4 v[16:19], v{vKV}, {sP}, s38 offen sc1'); A.vm.pop()
    A(f's_add_u32 s38, s38, {WS_RD - WS_FL}')
    A(f'buffer_store_dwordx4 v[16:19], v{vKV}, {sP}, s38 offen sc1'); A.vm.pop()
    A.label('L_nozero')
    A(f's_mov_b32 {sspin}, 0x80000')
    A(f's_lshl_b32 s38, {sb}, 5')
    A(f's_add_u32 s38, s38, {sh}')
    A(f's_lshl_b32 {sinb}, s38, 13')
    A(f'v_lshlrev_b32 v{vCL}, 4, v0')
    for k in range(4): A(f'v_mov_b32 v{12+k}, -1')
    def clear_inbox():
        A(f'buffer_store_dwordx4 v[12:15], v{vCL}, {sP}, {sinb} offen sc1', tag='clr')
        A(f's_add_u32 s38, {sinb}, 4096')
        A(f'buffer_store_dwordx4 v[12:15], v{vCL}, {sP}, s38 offen sc1', tag='clr')
    if not dbg & 32 and cpos == 0: clear_inbox()
    A(f'ds_write_b32 v16, v16 offset:{MD}')
    A('s_lshl_b32 s38, s2, 7')
    A(f's_add_u32 {sflo}, s38, {WS_FL}')
    A(f's_mov_b32 {sc}, {hex(f2u(math.log2(math.e) / math.sqrt(128.0)))}')
    A('v_and_b32 v10, 7, v7')
    A('v_lshrrev_b32 v11, 1, v10')
    A('v_and_b32 v10, 1, v10')
    A('v_lshlrev_b32 v10, 4, v10')
    A('v_mov_b32 v20, 0xffff')
    A('v_lshlrev_b32 v20, v10, v20')
    for r in range(4):
        A(f'v_cmp_eq_u32 vcc, {r}, v11')
        A(f'v_cndmask_b32 v{MK+r}, 0, v20, vcc')
    A(f's_lshl_b32 s38, {sw}, 9')
    A(f'v_lshlrev_b32 v{vST}, 3, v6')
    A(f'v_lshl_add_u32 v{vST}, v7, 5, v{vST}')
    A(f'v_add_u32 v{vST}, s38, v{vST}')
    A(f'v_lshrrev_b32 v{vGO+1}, 2, v{vKV}')
    A(f'v_and_b32 v{vGO+1}, 28, v{vGO+1}')
    A('s_mov_b64 vcc, 0')
    def q_frag(br, jj):
        for r in range(4):
            A(f'v_and_b32_dpp v{FR[jj & 1]+r}, v{DX + (jj & 3)}, v{MK+r} row_newbcast:{jj >> 2}')
    def q_mm(br, jj):
        A.waitvm(('wq', br, jj))
        c = '0' if jj == 0 else f'v[{ACC[0]}:{ACC[0]+3}]'
        A(f'v_mfma_f32_16x16x32_bf16 v[{ACC[0]}:{ACC[0]+3}], v[{FR[jj & 1]}:{FR[jj & 1]+3}], a[{4*jj}:{4*jj+3}], {c}')
    def q_write(br):
        A(f'v_lshrrev_b32 v{t0}, 8, v{vKV}')
        A(f'v_and_b32 v{t1}, 0xf0, v{vKV}')
        A(f'v_lshlrev_b32 v{t0}, 4, v{t0}')
        A(f'v_lshl_add_u32 v{t0}, v{t1}, 1, v{t0}')
        A(f's_lshl_b32 s38, {sw}, 9')
        A(f'v_add_u32 v{t0}, s38, v{t0}')
        A('s_mov_b64 exec, 0xffffffff')
        A(f'ds_write_b128 v{t0}, v[{ACC[0]}:{ACC[0]+3}] offset:{QP[br]}')
        A('s_mov_b64 exec, -1')
    def q_read(br, G, q):
        A(f'v_and_b32 v{t0}, 0xf0, v{vKV}')
        A(f'v_lshlrev_b32 v{t0}, 1, v{t0}')
        for hlf in range(2):
            for w in range(4):
                r = G[4 * hlf + w]
                A(f'ds_read_b128 v[{r}:{r+3}], v{t0} offset:{QP[br] + w*512 + 16*hlf}')
        for hlf in range(2):
            U = G[4 * hlf:4 * hlf + 4]
            A(f's_waitcnt lgkmcnt({4 - 4*hlf})')
            for e in range(0, 4, 2):
                A(f'v_pk_add_f32 v[{U[0]+e}:{U[0]+e+1}], v[{U[0]+e}:{U[0]+e+1}], v[{U[1]+e}:{U[1]+e+1}]')
                A(f'v_pk_add_f32 v[{U[2]+e}:{U[2]+e+1}], v[{U[2]+e}:{U[2]+e+1}], v[{U[3]+e}:{U[3]+e+1}]')
            for e in range(0, 4, 2): A(f'v_pk_add_f32 v[{U[0]+e}:{U[0]+e+1}], v[{U[0]+e}:{U[0]+e+1}], v[{U[2]+e}:{U[2]+e+1}]')
            for r in range(2): A(f'v_cvt_pk_bf16_f32 v{q+2*hlf+r}, v{U[0]+2*r}, v{U[0]+2*r+1}')
    boost = [0, 0]
    def refill(k):
        free = 45
        while free < 1024 and (free % 16 if free < 61 else free - 16) <= k: free += 1
        first = True
        Nk = N + (NE if k >= 4 * HE else 0); Dk = DL + (DE if k >= 4 * HE else 0)
        while nxt[0] < min(max(k + 1 + Nk, min(k + 1 + boost[0], boost[1])), free, 1024):
            if first and Dk and 4 * C0 + 16 <= k and ('kv', k + Dk) in A.vm:
                n = len(A.vm) - 1 - A.vm.index(('kv', k + Dk))
                A(f's_cbranch_vccz L_d{k}')
                A(f's_waitcnt vmcnt({n})')
                A.label(f'L_d{k}')
            first = False
            A.cap(58); kv_load()
    BANK = [0, 2, 1, 3]
    hooks = {}
    def hook(hb, j, f): hooks.setdefault((hb, j if sp else 3), []).append(f)
    def run_hooks(hb, j):
        for f in hooks.get((hb, j), []): f()
    def kblock(hb):
        n = hb & 63; u = SC + n
        for j in range(4):
            k = 4 * hb + j
            A.waitvm(('kv', k))
            for r in range(4):
                c = '0' if r == 0 else f'v{a[j]}'
                A(f'v_dot2_f32_bf16 v{a[j]}, v{R_(k)+r}, v{Q+r}, {c}')
            refill(k)
            if j < 3: run_hooks(hb, j)
        A(f'v_add_f32_dpp v{t0}, v{a[0]}, v{a[0]} row_ror:8 row_mask:0xf bank_mask:0x3')
        A(f'v_add_f32_dpp v{t1}, v{a[2]}, v{a[2]} row_ror:8 row_mask:0xf bank_mask:0x3')
        A(f'v_add_f32_dpp v{t0}, v{a[1]}, v{a[1]} row_ror:8 row_mask:0xf bank_mask:0xc')
        A(f'v_add_f32_dpp v{t1}, v{a[3]}, v{a[3]} row_ror:8 row_mask:0xf bank_mask:0xc')
        A(f'v_add_f32_dpp v{p}, v{t0}, v{t0} row_half_mirror row_mask:0xf bank_mask:0x5')
        A(f'v_add_f32_dpp v{p}, v{t1}, v{t1} row_half_mirror row_mask:0xf bank_mask:0xa')
        A(f'v_add_f32_dpp v{p}, v{p}, v{p} quad_perm:[1,0,3,2]')
        A(f'v_add_f32_dpp v{u}, v{p}, v{p} quad_perm:[2,3,0,1]')
        if n == 0: A(f'v_mov_b32 v{M}, v{u}')
        else: A(f'v_max_f32 v{M}, v{M}, v{u}')
        run_hooks(hb, 3)
    def across_rows(op, r):
        for swap in ('v_permlane32_swap_b32', 'v_permlane16_swap_b32'):
            A(f'v_mov_b32 v{t0}, v{r}')
            A(f'{swap} v{r}, v{t0}')
            A(f'{op} v{r}, v{r}, v{t0}')
    def wave_max():
        A(f'v_max_f32_dpp v{M}, v{M}, v{M} row_ror:4')
        A(f'v_max_f32_dpp v{M}, v{M}, v{M} row_ror:8')
        across_rows('v_max_f32', M)
        A(f'v_mul_f32 v{mx}, {sc}, v{M}')
        A(f'v_mov_b32 v{L}, 0')
        for e in range(8): A(f'v_mov_b32 v{O+e}, 0')
    def prob(n, dst):
        A(f'v_fma_f32 v{dst}, v{SC+n}, {sc}, -v{mx}')
        A(f'v_exp_f32 v{dst}, v{dst}')
    def vblock(hb, ready):
        n = hb & 63
        if not ready: prob(n, p)
        src = SC + n if ready else p
        A(f'v_cvt_pk_bf16_f32 v{plo}, v{src}, 0')
        A(f'v_cvt_pk_bf16_f32 v{phi}, 0, v{src}')
        if not ready: A(f'v_add_f32 v{L}, v{L}, v{p}')
        for j in range(4):
            k = 4 * hb + j
            A.waitvm(('kv', k))
            for r in range(4):
                A(f'v_dot2c_f32_bf16_dpp v{O+2*r}, v{plo}, v{R_(k)+r} row_newbcast:{4*BANK[j]}')
                A(f'v_dot2c_f32_bf16_dpp v{O+2*r+1}, v{phi}, v{R_(k)+r} row_newbcast:{4*BANK[j]}')
            refill(k)
            run_hooks(hb, j)
    def merge_o():
        for e in range(4): A(f'v_permlane32_swap_b32 v{O+e}, v{O+4+e}')
        for e in range(4): A(f'v_add_f32 v{O+e}, v{O+e}, v{O+4+e}')
        for e in range(2): A(f'v_permlane16_swap_b32 v{O+e}, v{O+2+e}')
        for e in range(2): A(f'v_add_f32 v{O+e}, v{O+e}, v{O+2+e}')
    def write_ml(br):
        A(f'v_add_f32_dpp v{L}, v{L}, v{L} row_ror:4')
        A(f'v_add_f32_dpp v{L}, v{L}, v{L} row_ror:8')
        across_rows('v_add_f32', L)
        A(f's_lshl_b32 s38, {sw}, 3')
        A(f'v_mov_b32 v{t0}, s38')
        A(f'ds_write_b64 v{t0}, v[{M}:{L}] offset:{ML[br]}')
    def weights(T, own=None):
        A(f'v_max3_f32 v{t0}, v{T}, v{T+2}, v{T+4}')
        A(f'v_max_f32 v{t0}, v{t0}, v{T+6}')
        A(f'v_mul_f32 v{t0}, {sc}, v{t0}')
        if own: A(f'v_fma_f32 v{own}, v{M}, {sc}, -v{t0}')
        for k in range(4): A(f'v_fma_f32 v{T+2*k}, v{T+2*k}, {sc}, -v{t0}')
        if own: A(f'v_exp_f32 v{own}, v{own}')
        for k in range(4): A(f'v_exp_f32 v{T+2*k}, v{T+2*k}')
        A(f'v_mul_f32 v{t0}, v{T}, v{T+1}')
        for k in range(1, 4): A(f'v_fmac_f32 v{t0}, v{T+2*k}, v{T+2*k+1}')
        A(f'v_rcp_f32 v{t0}, v{t0}')
    def wo_load(br, i):
        rg, ch = i >> 1, i & 1
        if i == 0:
            base(sW, PWO[br])
            A(f's_lshl_b32 s38, {sh}, 18')
            A(f's_lshl_b32 {swob}, {sw}, 9')
            A(f's_add_u32 {swob}, {swob}, s38')
        if i % 8 == 0:
            A(f's_lshl_b32 {swo}, s{STG + i//8}, 13')
            A(f's_add_u32 {swo}, {swo}, {swob}')
        A.cap(58)
        A(f'buffer_load_dwordx4 a[{4*i}:{4*i+3}], v{vWO}, {sW}, {swo} offen offset:{(rg&1)*2048 + 256*ch} {wpol}', tag=('wo', br, i))
        if i % 4 == 3: A(f's_add_u32 {swo}, {swo}, 4096')
    GS = TQ; vRD = TQ + 1; DU = TQ + 2
    def o_setup():
        A(f'v_lshrrev_b32 v{t1}, 4, v{vKV}')
        A(f's_lshl_b32 s38, s{STG}, 1')
        A(f'v_add_u32 v{t1}, s38, v{t1}')
        A(f'v_and_b32 v{t1}, 15, v{t1}')
        A(f'v_lshrrev_b32 v{vRD}, 8, v{vKV}')
        A(f'v_lshlrev_b32 v{vRD}, 7, v{vRD}')
        A(f'v_lshl_add_u32 v{vRD}, v{t1}, 3, v{vRD}')
    def o_frag(rg):
        for r in range(4):
            A(f'v_and_b32_dpp v{FR[rg & 1]+r}, v{DU + (rg & 1)}, v{MK+r} row_newbcast:{rg >> 1}')
    def o_mm(rg, acc):
        for ch in range(2):
            i = 2 * rg + ch
            c = '0' if rg == 0 else f'v[{acc[ch]}:{acc[ch]+3}]'
            A(f'v_mfma_f32_16x16x32_bf16 v[{acc[ch]}:{acc[ch]+3}], v[{FR[rg & 1]}:{FR[rg & 1]+3}], a[{4*i}:{4*i+3}], {c}')
    def pace(hb): pass
    def pace_(hb):
        if not DL or hb < C0 or hb > C1: return
        ph = (hb - C0) % CP; val = 2 + (hb - C0) // CP
        if ph == 0:
            def body():
                A(f's_mov_b32 s100, {val}')
                A(f's_atomic_umax s100, s[20:21], {sflo}')
                bit = 1 << (10 + int(str(hc)[(val - 2) % len(str(hc))]))
                if NP == 16:
                    A(f's_and_b32 s60, {sflo}, {hex(~(0x380 | bit) & 0xffffffff)}')
                    for k in range(16):
                        A(f's_add_u32 s38, s60, {128 * (k & 7) + bit * (k >> 3)}')
                        A(f's_load_dword s{SL[k]}, s[20:21], s38 glc')
                elif NP < 8:
                    ms = [[3, 5, 6, 7, 1, 2, 4], [1, 6, 4, 3, 7, 5, 2], [7, 2, 5, 4, 3, 6, 1]][val % 3]
                    for k in range(NP):
                        A(f's_xor_b32 s38, {sflo}, {hex((ms[k] << 7) | (bit if (k ^ val) & 1 else 0))}')
                        A(f's_load_dword s{SL[k]}, s[20:21], s38 glc')
                else:
                    A(f's_and_b32 s60, {sflo}, {hex(~0x380 & 0xffffffff)}')
                    A(f's_xor_b32 s61, s60, {bit}')
                    for k in range(8):
                        A(f's_add_u32 s38, {"s61" if (k ^ (k >> 1) ^ val) & 1 else "s60"}, {128 * k}')
                        A(f's_load_dword s{SL[k]}, s[20:21], s38 glc')
            only(val % 4, f'p{hb}', body)
        if ph == 2:
            def body():
                A('s_mov_b32 s101, 0')
                A('s_waitcnt lgkmcnt(0)')
                for k in range(NP):
                    A(f's_cmp_ge_u32 s{SL[k]}, {val}')
                    A('s_addc_u32 s101, s101, 0')
                A(f's_cmp_lt_u32 s101, {RK}')
                A('s_cselect_b32 s38, -1, 0')
                A(f'v_mov_b32 v{t0}, 0')
                A(f'v_mov_b32 v{t1}, s38')
                A(f'ds_write_b32 v{t0}, v{t1} offset:{MD}')
            only(val % 4, f'p{hb}', body)
        if ph == 3:
            A(f'v_mov_b32 v{t0}, 0')
            A(f'ds_read_b32 v{vMD}, v{t0} offset:{MD}')
        if ph == 4:
            A('s_waitcnt lgkmcnt(0)')
            A(f'v_cmp_ne_u32 vcc, 0, v{vMD}')
    qld = {}; qmm = {}; ald = {}; bld = {}
    for i in range(64):
        h_ = 0 if i < 8 else QS + int((i - 8) / QR)
        qld.setdefault(h_, []).append(i)
        qmm.setdefault(max(h_ + 3, QS + 1), []).append(i)
        ha = AS + int(i / AR); assert ha >= max(h_ + 3, QS + 1) and ha + 2 <= 129 + CB + i // 4
        ald.setdefault(ha, []).append(i)
        hbb = 128 + BS + int(i / BR); assert hbb >= 129 + CB + i // 4 and hbb < 250
        bld.setdefault(hbb, []).append(i)
    QE = max(qmm) + 1
    assert QE + 4 < 128 and AS > max(qld) and max(ald) < min(bld) and QS >= 9 and C0 > 24
    def extras(hb): pass
    for hb_ in range(256):
        hook(hb_, 0, lambda hb=hb_: pace_(hb))
        if pst == 2 and hb_ in (1, 3, 7, 11, 19, 31): hook(hb_, 3, lambda hb=hb_: stamp(1 + (1, 3, 7, 11, 19, 31).index(hb), True))
        if BP and hb_ >= max(B0, HJ) and (hb_ - B0) % BP == 0:
            for j_ in str(BJ): hooks.setdefault((hb_, int(j_)), []).insert(0, lambda: A('s_barrier'))
        hook(hb_, 1, lambda hb=hb_: extras_(hb, 1))
        hook(hb_, 2, lambda hb=hb_: extras_(hb, 2))
        hook(hb_, 3, lambda hb=hb_: extras_(hb, 3))
    def extras_(hb, part):
        if part == 1:
            for i in qmm.get(hb, []):
                if hb == QS + 1 and i == qmm[hb][0]: x_dup(1)
                q_frag(1, i); q_mm(1, i)
            return
        if part == 2:
            if hb == 0: base(sW, PWQ[1]); base(sX, PX[1])
            for i in qld.get(hb, []):
                A.cap(58); wq_load(1, i)
            for i in ald.get(hb, []): wo_load(0, i)
            for i in bld.get(hb, []): wo_load(1, i)
            return
        if hb == 0: x_load(1)
        if hb == QE: q_write(1)
        if hb == QE + 4:
            A('s_waitcnt lgkmcnt(0)')
            if not dbg & 8: A('s_barrier')
            q_read(1, [TQ + 4 * k for k in range(8)], QB)
    def front(v, early, lt, bst):
        for _ in range(early): kv_load()
        rest = list(range(8, 64))
        pstamp(3)
        x_dup(0)
        pstamp(4)
        while rest and len(A.vm) < min(WIN + early, 58): wq_load(0, rest.pop(0))
        pstamp(5)
        q_frag(0, 0)
        for jj in range(64):
            if jj < 63: q_frag(0, jj + 1)
            q_mm(0, jj)
            while rest and len(A.vm) < WIN: wq_load(0, rest.pop(0))
        pstamp(6)
        assert not rest and 'clr' not in A.vm
        if cpos == 1: clear_inbox()
        q_write(0)
        for _ in range(lt): kv_load()
        A('s_waitcnt lgkmcnt(0)')
        A('s_barrier')
        q_read(0, [12, 16, 48, 52, 60, SC, SC + 4, SC + 8], Q)
        A(f's_or_b32 s38, {sw}, {sh}')
        A('s_cmp_eq_u32 s38, 0')
        A(f's_cbranch_scc0 L_nosig{v}')
        A(f's_lshl_b32 s38, {sb}, 2')
        A(f'v_mov_b32 v{t0}, s38')
        A(f'v_mov_b32 v{t1}, 1')
        A('s_mov_b64 exec, 1')
        A(f'global_store_dword v{t0}, v{t1}, {sdbg} sc1'); A.vm.pop()
        A('s_mov_b64 exec, -1')
        A.label(f'L_nosig{v}')
        stamp(1)
        boost[:] = bst
        for hb in range(HJ):
            kblock(hb); extras(hb)
        boost[:] = [0, 0]
    if alt:
        if alt == 1:
            A(f's_bitcmp1_b32 s2, {3 + ab}')
            A('s_cbranch_scc1 L_frontB')
            fronts = [('A', 0, late, [NA, CA]), ('B', RB - R1, LB, [45, RB + LB + N + NB])]
        else:
            A('s_lshr_b32 s37, s2, 3')
            A('s_mul_i32 s38, s37, 11')
            A('s_lshr_b32 s38, s38, 5')
            A('s_mul_i32 s38, s38, 3')
            A('s_sub_u32 s37, s37, s38')
            A('s_cmp_eq_u32 s37, 1')
            A('s_cbranch_scc1 L_frontB')
            A('s_cmp_eq_u32 s37, 2')
            A('s_cbranch_scc1 L_frontC')
            fronts = [('A', 0, late, [NA, CA]), ('B', RB - R1, LB, [45, RB + LB + NB3]), ('C', RC - R1, LC, [45, RC + LC + N])]
        vm0, n0 = list(A.vm), nxt[0]
        for i, f in enumerate(fronts):
            A.vm, nxt[0] = list(vm0), n0
            if i: A.label(f'L_front{f[0]}')
            front(*f)
            if i == 0: vmA, nA = list(A.vm), nxt[0]
            assert A.vm == vmA and nxt[0] == nA, (A.vm, vmA)
            if i + 1 < len(fronts): A('s_branch L_join')
        A.label('L_join')
        A('s_nop 1')
    else:
        front('A', 0, late, [32, R1 + late + N])
    for hb in range(HJ, 64):
        kblock(hb); pace(hb); extras(hb)
        if hb == 14:
            def body():
                A(f'global_load_dword v{vGO}, v{vGO+1}, {sdbg} sc1'); A.vm.pop()
            only(0, 'g', body)
        if hb == 20:
            def body():
                A.label('L_go')
                A(f'v_cmp_eq_u32 vcc, 0, v{vGO}')
                A('s_cbranch_vccz L_gone')
                A(f'global_load_dword v{vGO}, v{vGO+1}, {sdbg} sc1'); A.vm.pop()
                countdown('L_bail')
                A('s_waitcnt vmcnt(0)')
                A('s_branch L_go')
                A.label('L_gone')
            only(0, 'h', body)
        if hb == 24:
            assert 'clr' not in A.vm
            A('s_barrier')
            def body():
                A('s_mov_b32 s100, 1')
                A(f's_add_u32 s101, {sflo}, {WS_RD - WS_FL}')
                A('s_atomic_umax s100, s[20:21], s101')
            only(0, 'i', body)
    stamp(2)
    wave_max()
    for hb in range(64, 128):
        vblock(hb, False); pace(hb); extras(hb)
    stamp(3)
    write_ml(0)
    merge_o()
    A(f'ds_write_b64 v{vST}, v[{O}:{O+1}] offset:{ST[0]}')
    for r in range(4): A(f'v_mov_b32 v{Q+r}, v{QB+r}')
    for rg_ in range(32):
        def om(rg=rg_):
            A.waitvm(('wo', 0, 2 * rg + 1))
            if not dbg & 2: o_frag(rg); o_mm(rg, ACC)
        hooks.setdefault((129 + CB + rg_ // 2, (rg_ & 1) if sp else 3), []).insert(0, om) if sp else hook(129 + CB + rg_ // 2, 3, om)
    for hb in range(128, 192):
        kblock(hb); pace(hb)
        n = hb - 128
        if n == CB and not dbg & 4:
            T = XD[1]
            o_setup()
            A('s_waitcnt lgkmcnt(0)')
            if not dbg & 1: A('s_barrier')
            A(f'v_mov_b32 v{t0}, 0')
            for k in range(2): A(f'ds_read_b128 v[{T+4*k}:{T+4*k+3}], v{t0} offset:{ML[0]+16*k}')
            for k in range(4): A(f'ds_read_b64 v[{T+8+2*k}:{T+9+2*k}], v{vRD} offset:{ST[0]+512*k}')
            A('s_waitcnt lgkmcnt(4)')
            weights(T)
            A('s_waitcnt lgkmcnt(0)')
            for e in range(2):
                A(f'v_mul_f32 v{DU+e}, v{T}, v{T+8+e}')
                for k in range(1, 4): A(f'v_fmac_f32 v{DU+e}, v{T+2*k}, v{T+8+2*k+e}')
            for e in range(2): A(f'v_mul_f32 v{DU+e}, v{DU+e}, v{t0}')
            for e in range(2): A(f'v_cvt_pk_bf16_f32 v{DU+e}, v{DU+e}, v{DU+e}')
        extras(hb)
        if n == 56:
            A(f'v_lshrrev_b32 v{PN}, 7, v{vKV}')
            A(f'v_and_b32 v{PN}, 3, v{PN}')
            A(f'v_lshlrev_b32 v{PN}, 13, v{PN}')
            A(f'v_and_b32 v{PN+1}, 0x70, v{vKV}')
            A(f'v_lshl_add_u32 v{PN}, v{PN+1}, 3, v{PN}')
            A(f's_lshl_b32 s37, {sb}, 10')
            A(f's_add_u32 s37, s37, {WS_RD}')
            def body():
                A(f'buffer_load_dword v{PN+1}, v{PN}, {sP}, s37 offen sc1'); A.vm.pop()
            only(0, 'f', body)
    stamp(4)
    wave_max()
    for hb in range(192, 256):
        n = hb - 192
        if n == 0:
            prob(0, SC); A(f'v_add_f32 v{L}, v{L}, v{SC}')
        if n < 16:
            for j in range(4):
                m = 4 * n + j + 1
                if m < 64:
                    def cv(m=m):
                        prob(m, SC + m); A(f'v_add_f32 v{L}, v{L}, v{SC+m}')
                    hook(hb, j, cv)
        vblock(hb, True); pace(hb); extras(hb)
        if n == 8:
            def body():
                A('s_mov_b64 s[60:61], vcc')
                A.label('L_rdy')
                A(f'v_cmp_eq_u32 vcc, 0, v{PN+1}')
                A('s_cbranch_vccz L_rdyok')
                A(f'buffer_load_dword v{PN+1}, v{PN}, {sP}, s37 offen sc1'); A.vm.pop()
                countdown('L_end')
                A('s_waitcnt vmcnt(0)')
                A('s_branch L_rdy')
                A.label('L_rdyok')
                A('s_mov_b64 vcc, s[60:61]')
            only(0, 'r', body)
        if n == 16: write_ml(1)
        if n == NL:
            T = XD[1]
            A('s_waitcnt lgkmcnt(0)')
            if not dbg & 16: A('s_barrier')
            A(f'v_mov_b32 v{t0}, 0')
            for k in range(2): A(f'ds_read_b128 v[{T+4*k}:{T+4*k+3}], v{t0} offset:{ML[1]+16*k}')
            A(f'v_lshrrev_b32 v5, 4, v{vKV}')
            A('v_and_b32 v7, 15, v5')
            A('v_lshrrev_b32 v6, 4, v5')
            A('v_lshrrev_b32 v9, 2, v7')
            A('v_lshlrev_b32 v9, 13, v9')
            A('v_and_b32 v8, 3, v7')
            A('v_lshl_add_u32 v9, v8, 5, v9')
            A('v_lshl_add_u32 v9, v6, 4, v9')
            A(f's_lshl_b32 s96, {sb}, 18')
            A(f's_lshl_b32 s38, {sw}, 16')
            A('s_add_u32 s96, s96, s38')
            A(f's_lshl_b32 s38, {sh}, 7')
            A('s_add_u32 s96, s96, s38')
            A('s_add_u32 s97, s96, 32768')
            A('s_add_u32 s98, s96, 4096')
            A('s_add_u32 s99, s97, 4096')
            A('v_and_b32 v10, 7, v5')
            A('v_lshrrev_b32 v11, 5, v5')
            A('v_lshlrev_b32 v10, 3, v10')
            A('v_lshl_add_u32 v10, v11, 2, v10')
            A(f's_lshl_b32 s94, {sb}, 12')
            A(f's_lshl_b32 s38, {sh}, 6')
            A('s_add_u32 s94, s94, s38')
            A(f's_xor_b32 s38, {sw}, 1')
            A('s_lshl_b32 s39, s38, 11')
            A('s_add_u32 s94, s94, s39')
            A('s_lshl_b32 s38, s38, 12')
            A(f's_add_u32 s95, {sinb}, s38')
            A('s_waitcnt lgkmcnt(0)')
            weights(T, GS)
            A(f'v_mul_f32 v{GS}, v{GS}, v{t0}')
    assert not A.vm
    stamp(5)
    T = RING
    def publish(acc, s0, s1):
        A('s_mov_b64 exec, 0xffffffff')
        A(f'buffer_store_dwordx4 v[{acc[0]}:{acc[0]+3}], v9, {sP}, {s0} offen sc1')
        A(f'buffer_store_dwordx4 v[{acc[1]}:{acc[1]+3}], v9, {sP}, {s1} offen sc1')
        A('s_mov_b64 exec, -1')
    ACB = [T + 16, T + 20]
    merge_o()
    A(f'v_pk_mul_f32 v[{O}:{O+1}], v[{O}:{O+1}], v[{GS}:{GS+1}] op_sel_hi:[1,0]')
    A(f'ds_write_b64 v{vST}, v[{O}:{O+1}] offset:{ST[1]}')
    A('s_waitcnt lgkmcnt(0)')
    A('s_barrier')
    for k in range(4): A(f'ds_read_b64 v[{T+2*k}:{T+2*k+1}], v{vRD} offset:{ST[1]+512*k}')
    publish(ACC, 's96', 's97')
    A('s_waitcnt lgkmcnt(2)')
    A(f'v_pk_add_f32 v[{T}:{T+1}], v[{T}:{T+1}], v[{T+2}:{T+3}]')
    A('s_waitcnt lgkmcnt(0)')
    A(f'v_pk_add_f32 v[{T+4}:{T+5}], v[{T+4}:{T+5}], v[{T+6}:{T+7}]')
    A(f'v_pk_add_f32 v[{T}:{T+1}], v[{T}:{T+1}], v[{T+4}:{T+5}]')
    for e in range(2): A(f'v_cvt_pk_bf16_f32 v{DU+e}, v{T+e}, v{T+e}')
    o_frag(0)
    for rg in range(32):
        if rg < 31: o_frag(rg + 1)
        o_mm(rg, ACB)
    publish(ACB, 's98', 's99')
    stamp(6)
    A(f's_cmp_gt_u32 {sw}, 1')
    A(f's_cbranch_scc1 {"L_stamp" if stamps else "L_end"}')
    T = RING + 32
    def missing(U, k, acc):
        A(f'v_max3_u32 v11, v{U+4*k}, v{U+4*k+1}, v{U+4*k+2}')
        A(f'v_max_u32 v11, v11, v{U+4*k+3}')
        A('v_cmp_eq_u32 vcc, -1, v11')
        A('s_cmp_lg_u64 vcc, 0')
        A(f's_cselect_b32 s38, {1<<k}, 0')
        A(f's_or_b32 {acc}, {acc}, s38')
    A(f's_mov_b32 {smask}, 15')
    A.label('L_poll')
    for k in range(4):
        A(f's_bitcmp1_b32 {smask}, {k}')
        A(f's_cbranch_scc0 L_skipld{k}')
        A(f'buffer_load_dwordx4 v[{T+4*k}:{T+4*k+3}], v{vKV}, {sP}, s95 offen offset:{k*1024} sc1')
        A.label(f'L_skipld{k}')
    if pp:
        A(f's_sleep {pp}')
        A(f's_mov_b32 s39, {smask}')
        for k in range(4):
            A(f's_bitcmp1_b32 {smask}, {k}')
            A(f's_cselect_b32 s38, s95, 0x40000000')
            A(f'buffer_load_dwordx4 v[{T+16+4*k}:{T+19+4*k}], v{vKV}, {sP}, s38 offen offset:{k*1024} sc1')
        A('s_waitcnt vmcnt(4)')
    else: A('s_waitcnt vmcnt(0)')
    A.vm = []
    A(f's_mov_b32 {smask}, 0')
    for k in range(4): missing(T, k, smask)
    A(f's_cmp_eq_u32 {smask}, 0')
    A('s_cbranch_scc1 L_sum')
    if pp:
        A('s_waitcnt vmcnt(0)')
        for k in range(4):
            A(f's_bitcmp1_b32 {smask}, {k}')
            A(f's_cbranch_scc0 L_keep{k}')
            for e in range(4): A(f'v_mov_b32 v{T+4*k+e}, v{T+16+4*k+e}')
            A.label(f'L_keep{k}')
        A(f's_mov_b32 {smask}, 0')
        for k in range(4): missing(T, k, smask)
        A(f's_cmp_eq_u32 {smask}, 0')
        A('s_cbranch_scc1 L_sum')
    elif slp: A(f's_sleep {slp}')
    countdown('L_end')
    A('s_branch L_poll')
    A.label('L_sum')
    for st in (8, 4):
        for k in range(0, st, 2): A(f'v_pk_add_f32 v[{T+k}:{T+k+1}], v[{T+k}:{T+k+1}], v[{T+st+k}:{T+st+k+1}]')
    for e in range(4): A(f'v_add_f32_dpp v{T+e}, v{T+e}, v{T+e} row_ror:8')
    for e in range(2): A(f'v_permlane32_swap_b32 v{T+e}, v{T+2+e}')
    for e in range(2): A(f'v_add_f32 v{T+e}, v{T+e}, v{T+2+e}')
    for e in range(2): A(f'v_mov_b32 v{T+2+e}, v{T+e}')
    for e in range(2): A(f'v_permlane16_swap_b32 v{T+e}, v{T+2+e}')
    for e in range(2): A(f'v_add_f32 v{T+e}, v{T+e}, v{T+2+e}')
    A(f'v_cvt_pk_bf16_f32 v{T}, v{T}, v{T+1}')
    A('s_mov_b32 exec_lo, 0xff'); A('s_mov_b32 exec_hi, 0xff')
    A(f'buffer_store_dword v{T}, v10, {sOut}, s94 offen')
    if pad:
        if pad <= 100:
            A('s_memrealtime s[60:61]')
            A('s_waitcnt lgkmcnt(0)')
            A('s_sub_u32 s60, s60, s62')
            A(f's_mul_i32 s63, s60, {pad}')
        else: A(f's_mov_b32 s63, {pad}')
        A.label('L_pad')
        A('s_sleep 8')
        A('s_memrealtime s[60:61]')
        A('s_waitcnt lgkmcnt(0)')
        A('s_sub_u32 s60, s60, s62')
        A('s_cmp_lt_u32 s60, s63')
        A('s_cbranch_scc1 L_pad')
    if stamps:
        A('s_mov_b64 exec, -1')
        A.label('L_stamp')
        A('s_lshl_b32 s37, s2, 2')
        stamp(7)
        A(f's_add_u32 s37, s37, {sw}')
        A('s_lshl_b32 s37, s37, 6')
        A('s_add_u32 s37, s37, 0x4000000')
        A('v_mov_b32 v4, s37')
        for k in range(8):
            A(f'v_mov_b32 v{8+2*k}, s{STS[k]}'); A(f'v_mov_b32 v{9+2*k}, 0')
        for k in range(4): A(f'global_store_dwordx4 v4, v[{8+4*k}:{11+4*k}], s[20:21] offset:{16*k}')
    A.label('L_end')
    A('s_endpgm')
    A.raw('.section .rodata,"a"')
    A.raw('.p2align 6')
    A.raw(f'.amdhsa_kernel {KN}')
    for l in ('next_free_vgpr 512', 'next_free_sgpr 102', 'accum_offset 256', 'group_segment_fixed_size 0', 'kernarg_size 104',
              'user_sgpr_count 2', 'user_sgpr_kernarg_segment_ptr 1', 'system_sgpr_workgroup_id_x 1'):
        A.raw('  .amdhsa_' + l)
    A.raw('.end_amdhsa_kernel')
    return A.text()

if __name__ == '__main__':
    for spec in sys.argv[1:]:
        kw = {}
        for kv in spec.split(','):
            if not kv or kv == 'x': continue
            k, v = kv.split('=')
            kw[k] = int(v) if v.lstrip('-').isdigit() else (float(v) if v.replace('.', '').isdigit() else v.replace('+', ' ').replace('none', ''))
        name = 'k12_' + spec.replace('=', '').replace(',', '_').replace('+', '') + '.s'
        open(name, 'w').write(gen(**kw))
        print(name)
```

```python
import re
TRANS = ('v_exp_f32', 'v_log_f32', 'v_rcp_f32', 'v_rsq_f32', 'v_sqrt_f32', 'v_sin_f32', 'v_cos_f32')
def regs_of(tok):
    tok = tok.strip().lstrip('-')
    if tok.startswith('abs(') or tok.startswith('|'):
        tok = tok.replace('abs(', '').replace(')', '').replace('|', '')
    m = re.fullmatch(r'([vas])(\d+)', tok)
    if m: return [(m.group(1), int(m.group(2)))]
    m = re.fullmatch(r'([vas])\[(\d+):(\d+)\]', tok)
    if m: return [(m.group(1), i) for i in range(int(m.group(2)), int(m.group(3)) + 1)]
    if tok == 'vcc': return [('s', 'vcc')]
    if tok == 'exec': return [('s', 'exec')]
    if tok == 'm0': return [('s', 'm0')]
    return []
class Ins:
    def __init__(self, text):
        self.text = text
        t = text.split(';')[0].strip()
        parts = t.split(None, 1)
        self.op = parts[0]
        rest = parts[1] if len(parts) > 1 else ''
        ops = re.split(r',\s*(?![^\[]*\])', rest) if rest else []
        self.mods = ''
        if ops:
            last = ops[-1].strip().split(None, 1)
            ops[-1] = last[0] if last else ''
            self.mods = last[1] if len(last) > 1 else ''
        self.ops = [o.strip() for o in ops]
        op = self.op
        self.valu = op.startswith('v_') and not op.startswith(('v_mfma', 'v_smfmac'))
        self.mfma = op.startswith(('v_mfma', 'v_smfmac'))
        self.vmem = op.startswith(('buffer_', 'global_'))
        self.ds = op.startswith('ds_')
        self.salu = op.startswith('s_')
        self.dpp = '_dpp' in op
        self.dot = op.startswith('v_dot')
        self.trans = op.replace('_e32', '').replace('_e64', '') in TRANS
        R = [regs_of(o) for o in self.ops]
        w, r = [], []
        self.srcc = []
        self.srcab = []
        self.stdata = []
        if op.startswith('v_smfmac'):
            w = R[0]; r = R[0] + R[1] + R[2] + R[3]; self.srcc = R[0]; self.srcab = R[1] + R[2] + R[3]
        elif self.mfma:
            w = R[0]; r = R[1] + R[2] + R[3]; self.srcc = R[3]; self.srcab = R[1] + R[2]
        elif self.valu:
            if op.startswith('v_cmp'):
                w = R[0]; r = sum(R[1:], [])
            elif op.startswith(('v_permlane32_swap', 'v_permlane16_swap', 'v_swap')):
                w = R[0] + R[1]; r = R[0] + R[1]
            elif op.startswith(('v_add_co', 'v_sub_co', 'v_addc_co', 'v_subb_co')):
                w = R[0] + R[1]; r = sum(R[2:], [])
            else:
                w = R[0]; r = sum(R[1:], [])
                if op.startswith(('v_fmac', 'v_dot2c', 'v_writelane')) or self.dpp:
                    r = r + R[0]
                if op.startswith('v_dot2c'): self.srcc = R[0]; self.srcab = R[1] + R[2]
                elif op.startswith('v_dot2'): self.srcc = R[3]; self.srcab = R[1] + R[2]
                if op.startswith('v_cndmask') and len(R) == 3: r = r + [('s', 'vcc')]
        elif self.vmem:
            if 'load' in op and ' lds' not in (' ' + self.mods):
                w = R[0]; r = sum(R[1:], [])
            elif 'atomic' in op and 'sc0' in self.mods:
                if op.startswith('global'): w = R[0]; r = sum(R[1:], [])
                else: w = R[0]; r = sum(R, [])
            else:
                r = sum(R, [])
                if 'store' in op and ('x4' in op or 'x3' in op):
                    self.stdata = R[0] if op.startswith('buffer') else R[1]
        elif self.ds:
            if 'read' in op or 'rtn' in op or 'permute' in op or 'swizzle' in op:
                w = R[0]; r = sum(R[1:], [])
            else:
                r = sum(R, [])
        elif self.salu:
            if R and not op.startswith(('s_cmp', 's_waitcnt', 's_nop', 's_cbranch', 's_branch', 's_barrier', 's_bitcmp', 's_setprio', 's_sleep', 's_endpgm')):
                w = R[0]; r = sum(R[1:], [])
            else:
                r = sum(R, [])
        self.w = set(w); self.r = set(r)
        self.ws = 1
        if op == 's_nop': self.ws = int(self.ops[0], 0) + 1
def need(p, c):
    n = 0
    vw = {x for x in p.w if x[0] in 'va'}
    sw = {x for x in p.w if x[0] == 's'}
    if p.valu:
        if c.dpp and vw & c.r: n = max(n, 2)
        if p.trans and c.valu and not c.trans and vw & c.r: n = max(n, 1)
        if c.mfma and vw & c.r: n = max(n, 2)
        if c.op.startswith(('v_readlane', 'v_readfirstlane')) and vw & c.r: n = max(n, 1)
        if c.op.startswith('v_permlane') and vw & c.r: n = max(n, 2)
        if sw:
            if c.vmem and sw & c.r: n = max(n, 5)
            if c.valu and sw & c.r: n = max(n, 4 if c.op.startswith(('v_readlane', 'v_writelane')) else 2)
            if c.salu and sw & c.r: n = max(n, 2)
            if c.op.startswith('s_cbranch_vcc') and ('s', 'vcc') in sw: n = max(n, 2)
        if p.dot and (c.valu or c.mfma or c.vmem or c.ds):
            base = lambda o: o.replace('_dpp', '').replace('_e32', '').replace('_e64', '')
            if c.dot and base(c.op) == base(p.op):
                if vw & set(c.srcab): n = max(n, 3)
            elif vw & (c.r | c.w): n = max(n, 3)
    if p.mfma:
        passes = 8 if '32x32' in p.op else 4
        big = {4: 8, 8: 12}[passes]
        if c.mfma:
            if vw & set(c.srcab): n = max(n, big)
            if vw & set(c.srcc) and set(c.srcc) != vw: n = max(n, big - 2)
            if vw & c.w and set(c.srcc) != vw: n = max(n, big)
        elif (c.valu or c.vmem or c.ds) and vw & (c.r | c.w): n = max(n, big)
        if c.valu and set(p.srcc) & c.w: n = max(n, {4: 3, 8: 7}[passes])
    if p.stdata and set(p.stdata) & c.w: n = max(n, 2)
    if p.salu and ('s', 'm0') in p.w and (' lds' in ' ' + c.mods or c.op.startswith('s_movrel')): n = max(n, 1)
    return n
class Asm:
    def __init__(self):
        self.lines = []
        self.hist = []
        self.vm = []
        self.maxvm = 0
        self.issued = set()
        self.nops = 0
    def raw(self, text):
        self.lines.append(text)
    def label(self, name, keep_hist=True):
        self.lines.append(name + ':')
    def __call__(self, text, tag=None):
        c = Ins(text)
        dist = 0; req = 0
        for p in reversed(self.hist):
            k = need(p, c) - dist
            if k > req: req = k
            dist += p.ws
            if dist > 24: break
        while req > 0:
            k = min(req, 16)
            self.lines.append(f'  s_nop {k-1}')
            self.hist.append(Ins(f's_nop {k-1}')); self.nops += 1
            req -= k
        self.lines.append('  ' + text)
        self.hist.append(c)
        if len(self.hist) > 64: self.hist = self.hist[-64:]
        if c.vmem and not c.op.startswith(('buffer_inv', 'buffer_wbl2')):
            self.vm.append(tag); self.issued.add(tag)
            self.maxvm = max(self.maxvm, len(self.vm))
    def waitvm(self, tag, extra=''):
        idx = [i for i, t in enumerate(self.vm) if t == tag]
        if not idx:
            assert tag in self.issued, f'tag {tag} never issued'
            return None
        n = len(self.vm) - 1 - idx[-1]
        assert n <= 63, n
        self(f's_waitcnt vmcnt({n}){extra}')
        self.vm = self.vm[idx[-1] + 1:]
        return n
    def waitvm_n(self, n):
        self(f's_waitcnt vmcnt({n})')
        if len(self.vm) > n: self.vm = self.vm[len(self.vm) - n:]
    def cap(self, lim=62):
        if len(self.vm) > lim: self.waitvm_n(lim)
    def text(self):
        return '\n'.join(self.lines) + '\n'
```

```python
import sys, math, struct, copy
from asmlib import Asm
KN = 'concat_heads__mha_block_cached__mha_block_cached__decode_kernel'
def f2u(x): return struct.unpack('<I', struct.pack('<f', x))[0]

DOC = """; One workgroup (4 waves, one per SIMD) per (batch b, head h); it serves both branches.
"""

def gen(kvpol='nt', wpol='', stamps=0, pst=0, N=6, R1=4, WIN=32, late=12, slp=0, rot=5,
        QS=10, QR=1.0, AS=66, AR=1.0, BS=7, BR=1.0, DL=1, CP=14, RK=5, C0=32, NP=8, C1=250, hc='34012',
        alt=1, RB=28, NA=10, CA=36, ab=0, HJ=14, NB=0, LB=4, NB3=10, CB3=48, RC=42, LC=3, NE=0, HE=248, DE=0, sp=1, dbg=0, CB=4, cpos=0, BP=1, B0=12, NL=20, BJ='1', pp=0, sm=1, wb=8, WG=4, fp=1, pad=0, header=''):
    A = Asm()
    QR, AR, BR = float(QR), float(AR), float(BR)
    QP = [0, 2048]; ST = [4096, 6144]; ML = [8192, 8224]; OB = 8256; MD = 8512
    LDS = MD + 16
    WS_FL = 0x200000; WS_RD = 0x208000; WS_END = 0x210000
    A.raw(header + f'; @launch grid=(256,1,1) block=(256,1,1) lds={LDS}')
    if stamps: A.raw(f'; STAMPS 1024 8 {0x4000000}')
    A.raw(DOC.rstrip('\n'))
    A.raw('.amdgcn_target "amdgcn-amd-amdhsa--gfx950"')
    A.raw('.text')
    A.raw(f'.globl {KN}')
    A.raw('.p2align 8')
    A.raw(f'.type {KN},@function')
    A.label(KN)
    vKV, vWQ, vWO = 1, 2, 3
    Q, QB = 4, 8; PN = 8
    O = 12; M = 20; L = 21
    a = [22, 23, 24, 25]; t0, t1, p, mx, plo, phi = 26, 27, 28, 29, 30, 31
    vCL, vGO, vMD, vST = 32, 33, 35, 36
    MK = 40; DX = 44; FR = [48, 52]; ACC = [56, 60]; vXA = 37; XR = 38
    RING = 64; XD = [224, 128]; TQ = 160; SC = 192
    def R_(k):
        return RING + 4 * k if k < 32 else (SC + 12 + 4 * (k - 32) if k < 45 else RING + 4 * (k % 16))
    KV = ['s[4:7]', 's[8:11]', 's[12:15]', 's[16:19]']
    sP, sW, sX, sOut = 's[20:23]', 's[24:27]', 's[28:31]', 's[32:35]'
    sw, sh, sb, sx, soff, spos, sub, sc = 's64', 's65', 's66', 's67', 's68', 's69', 's70', 's71'
    swb, swo = 's72', 's73'; STG = 74
    sdbg = 's[82:83]'; sinb, sspin, sflo, swob, smask = 's86', 's87', 's88', 's84', 's85'
    PX, PWQ, PWO = [40, 50], [46, 56], [48, 58]
    SL = list(range(40, 48)) + list(range(50, 58))
    STS = [3, 36, 89, 90, 91, 92, 93, 2]
    def stamp(i, force=False):
        if stamps and (force or not pst or i == 7):
            A('s_memrealtime s[60:61]')
            A('s_waitcnt lgkmcnt(0)')
            A(f's_mov_b32 s{STS[i]}, s60')
    def pstamp(i):
        if pst == 1: stamp(i, True)
    def base(srd, ptr):
        r = int(srd[2:srd.index(':')])
        A(f's_mov_b32 s{r}, s{ptr}'); A(f's_mov_b32 s{r+1}, s{ptr+1}')
    def only(w, tagl, body):
        A(f's_cmp_eq_u32 {sw}, {w}')
        A(f's_cbranch_scc0 L_w{tagl}')
        body()
        A.label(f'L_w{tagl}')
    def countdown(target):
        A(f's_sub_u32 {sspin}, {sspin}, 1')
        A(f's_cmp_eq_u32 {sspin}, 0')
        A(f's_cbranch_scc1 {target}')
    A('s_cmp_ge_u32 s2, 256')
    A('s_cbranch_scc0 L_start')
    A.label('L_bail')
    A('s_endpgm')
    A.label('L_start')
    A('s_load_dwordx16 s[40:55], s[0:1], 0')
    A('s_load_dwordx4 s[56:59], s[0:1], 64')
    A('s_load_dwordx2 s[20:21], s[0:1], 96')
    A('s_load_dwordx2 s[32:33], s[0:1], 80')
    A('s_load_dwordx2 s[82:83], s[0:1], 88')
    if stamps: A('s_memrealtime s[60:61]')
    if pad: A('s_memrealtime s[62:63]')
    A('v_lshrrev_b32 v4, 6, v0')
    A('v_and_b32 v5, 63, v0')
    A(f'v_readfirstlane_b32 {sw}, v4')
    A('v_lshrrev_b32 v6, 4, v5')
    A('v_and_b32 v7, 15, v5')
    A(f'v_lshlrev_b32 v{vKV}, 4, v5')
    A('v_lshlrev_b32 v8, 4, v7')
    A(f'v_lshl_add_u32 v{vWQ}, v6, 19, v8')
    A(f'v_lshl_add_u32 v{vWO}, v6, 16, v8')
    A(f's_and_b32 {sx}, s2, 7')
    A('s_lshr_b32 s37, s2, 3')
    A(f's_and_b32 {sb}, s37, 7')
    A('s_lshr_b32 s37, s2, 6')
    A(f's_lshl_b32 s38, {sx}, 2')
    A(f's_or_b32 {sh}, s37, s38')
    for r, n in ((6, 0x10000000), (10, 0x10000000), (14, 0x10000000), (18, 0x10000000), (22, WS_END), (26, 0x800000), (30, 16384), (34, 32768)):
        A(f's_mov_b32 s{r}, {hex(n)}')
        A(f's_mov_b32 s{r+1}, 0x20000')
    A(f's_lshl_b32 s37, {sw}, 21')
    A(f's_lshl_b32 s38, {sh}, 8')
    A(f's_add_u32 {swb}, s37, s38')
    for t in range(8):
        A(f's_add_u32 s38, {sb}, {t}')
        A(f's_and_b32 s{STG+t}, s38, 7')
    A(f's_lshl_b32 s38, {sb}, 1')
    A('v_add_u32 v9, s38, v7')
    A('v_and_b32 v9, 15, v9')
    A('v_lshlrev_b32 v9, 3, v9')
    A('v_lshl_add_u32 v9, v6, 7, v9')
    A(f's_lshl_b32 s37, {sb}, 11')
    A(f's_lshl_b32 s38, {sw}, 9')
    A('s_add_u32 s37, s37, s38')
    A(f'v_add_u32 v{vXA}, s37, v9')
    A(f's_lshl_b32 {sub}, {sb}, 25')
    A(f's_lshl_b32 s38, {sh}, 20')
    A(f's_add_u32 {sub}, {sub}, s38')
    if rot == 5: A(f's_lshl_b32 s38, {sb}, 17')
    elif rot == 1:
        A('s_and_b32 s38, s2, 63'); A('s_lshl_b32 s38, s38, 14')
    else: A('s_mov_b32 s38, 0')
    A(f's_lshl_b32 {spos}, {sw}, 12')
    A(f's_add_u32 {spos}, {spos}, s38')
    A(f's_add_u32 {soff}, {spos}, {sub}')
    A('s_waitcnt lgkmcnt(0)')
    if stamps: A(f's_mov_b32 s{STS[0]}, s60')
    base(sW, PWQ[0]); base(sX, PX[0]); base(KV[0], 42)
    def wq_load(br, jj):
        if jj % 8 == 0:
            A(f's_lshl_b32 {swo}, s{STG + jj//8}, 16')
            A(f's_add_u32 {swo}, {swo}, {swb}')
        A(f'buffer_load_dwordx4 a[{4*jj}:{4*jj+3}], v{vWQ}, {sW}, {swo} offen {wpol}', tag=('wq', br, jj))
        if jj % 8 != 7: A(f's_add_u32 {swo}, {swo}, 8192')
    def x_load(br):
        A(f'buffer_load_dwordx2 v[{XR}:{XR+1}], v{vXA}, {sX}, 0 offen', tag=('x', br))
    def x_dup(br):
        A.waitvm(('x', br))
        A('s_mov_b32 s38, 0x01000100'); A('s_mov_b32 s39, 0x03020302')
        for e in range(4): A(f'v_perm_b32 v{DX+e}, v{XR+(e>>1)}, v{XR+(e>>1)}, s{38+(e&1)}')
    nxt = [0]
    def kv_load():
        k = nxt[0]; nxt[0] += 1
        r = R_(k)
        A(f'buffer_load_dwordx4 v[{r}:{r+3}], v{vKV}, {KV[k >> 8]}, {soff} offen offset:{1024*(k&3)} {kvpol}', tag=('kv', k))
        if k & 3 == 3 and k != 1023:
            A(f's_add_u32 {spos}, {spos}, 0x4000')
            A(f's_and_b32 {spos}, {spos}, 0xfffff')
            A(f's_add_u32 {soff}, {spos}, {sub}')
    for jj in range(8): wq_load(0, jj)
    pstamp(1)
    x_load(0)
    for _ in range(R1): kv_load()
    pstamp(2)
    base(KV[1], 44); base(KV[2], 52); base(KV[3], 54)
    for k in range(4): A(f'v_mov_b32 v{16+k}, 0')
    A(f's_cmp_eq_u32 {sh}, 0')
    A('s_cbranch_scc0 L_nozero')
    A(f's_lshl_b32 s38, {sw}, 3')
    A(f's_add_u32 s38, s38, {sb}')
    A('s_lshl_b32 s38, s38, 10')
    A(f's_add_u32 s38, s38, {WS_FL}')
    A(f'buffer_store_dwordx4 v[16:19], v{vKV}, {sP}, s38 offen sc1'); A.vm.pop()
    A(f's_add_u32 s38, s38, {WS_RD - WS_FL}')
    A(f'buffer_store_dwordx4 v[16:19], v{vKV}, {sP}, s38 offen sc1'); A.vm.pop()
    A.label('L_nozero')
    A(f's_mov_b32 {sspin}, 0x80000')
    A(f's_lshl_b32 s38, {sb}, 5')
    A(f's_add_u32 s38, s38, {sh}')
    A(f's_lshl_b32 {sinb}, s38, 13')
    A(f'v_lshlrev_b32 v{vCL}, 4, v0')
    for k in range(4): A(f'v_mov_b32 v{12+k}, -1')
    def clear_inbox():
        A(f'buffer_store_dwordx4 v[12:15], v{vCL}, {sP}, {sinb} offen sc1', tag='clr')
        A(f's_add_u32 s38, {sinb}, 4096')
        A(f'buffer_store_dwordx4 v[12:15], v{vCL}, {sP}, s38 offen sc1', tag='clr')
    if not dbg & 32 and cpos == 0: clear_inbox()
    A(f'ds_write_b32 v16, v16 offset:{MD}')
    A('s_lshl_b32 s38, s2, 7')
    A(f's_add_u32 {sflo}, s38, {WS_FL}')
    A(f's_mov_b32 {sc}, {hex(f2u(math.log2(math.e) / math.sqrt(128.0)))}')
    A('v_and_b32 v10, 7, v7')
    A('v_lshrrev_b32 v11, 1, v10')
    A('v_and_b32 v10, 1, v10')
    A('v_lshlrev_b32 v10, 4, v10')
    A('v_mov_b32 v20, 0xffff')
    A('v_lshlrev_b32 v20, v10, v20')
    for r in range(4):
        A(f'v_cmp_eq_u32 vcc, {r}, v11')
        A(f'v_cndmask_b32 v{MK+r}, 0, v20, vcc')
    A(f's_lshl_b32 s38, {sw}, 9')
    A(f'v_lshlrev_b32 v{vST}, 3, v6')
    A(f'v_lshl_add_u32 v{vST}, v7, 5, v{vST}')
    A(f'v_add_u32 v{vST}, s38, v{vST}')
    A(f'v_lshrrev_b32 v{vGO+1}, 2, v{vKV}')
    A(f'v_and_b32 v{vGO+1}, 28, v{vGO+1}')
    A('s_mov_b64 vcc, 0')
    def q_frag(br, jj):
        for r in range(4):
            A(f'v_and_b32_dpp v{FR[jj & 1]+r}, v{DX + (jj & 3)}, v{MK+r} row_newbcast:{jj >> 2}')
    def q_mm(br, jj):
        A.waitvm(('wq', br, jj))
        c = '0' if jj == 0 else f'v[{ACC[0]}:{ACC[0]+3}]'
        A(f'v_mfma_f32_16x16x32_bf16 v[{ACC[0]}:{ACC[0]+3}], v[{FR[jj & 1]}:{FR[jj & 1]+3}], a[{4*jj}:{4*jj+3}], {c}')
    def q_write(br):
        A(f'v_lshrrev_b32 v{t0}, 8, v{vKV}')
        A(f'v_and_b32 v{t1}, 0xf0, v{vKV}')
        A(f'v_lshlrev_b32 v{t0}, 4, v{t0}')
        A(f'v_lshl_add_u32 v{t0}, v{t1}, 1, v{t0}')
        A(f's_lshl_b32 s38, {sw}, 9')
        A(f'v_add_u32 v{t0}, s38, v{t0}')
        A('s_mov_b64 exec, 0xffffffff')
        A(f'ds_write_b128 v{t0}, v[{ACC[0]}:{ACC[0]+3}] offset:{QP[br]}')
        A('s_mov_b64 exec, -1')
    def q_read(br, G, q):
        A(f'v_and_b32 v{t0}, 0xf0, v{vKV}')
        A(f'v_lshlrev_b32 v{t0}, 1, v{t0}')
        for hlf in range(2):
            for w in range(4):
                r = G[4 * hlf + w]
                A(f'ds_read_b128 v[{r}:{r+3}], v{t0} offset:{QP[br] + w*512 + 16*hlf}')
        for hlf in range(2):
            U = G[4 * hlf:4 * hlf + 4]
            A(f's_waitcnt lgkmcnt({4 - 4*hlf})')
            for e in range(0, 4, 2):
                A(f'v_pk_add_f32 v[{U[0]+e}:{U[0]+e+1}], v[{U[0]+e}:{U[0]+e+1}], v[{U[1]+e}:{U[1]+e+1}]')
                A(f'v_pk_add_f32 v[{U[2]+e}:{U[2]+e+1}], v[{U[2]+e}:{U[2]+e+1}], v[{U[3]+e}:{U[3]+e+1}]')
            for e in range(0, 4, 2): A(f'v_pk_add_f32 v[{U[0]+e}:{U[0]+e+1}], v[{U[0]+e}:{U[0]+e+1}], v[{U[2]+e}:{U[2]+e+1}]')
            for r in range(2): A(f'v_cvt_pk_bf16_f32 v{q+2*hlf+r}, v{U[0]+2*r}, v{U[0]+2*r+1}')
    boost = [0, 0]
    def refill(k):
        free = 45
        while free < 1024 and (free % 16 if free < 61 else free - 16) <= k: free += 1
        first = True
        Nk = N + (NE if k >= 4 * HE else 0); Dk = DL + (DE if k >= 4 * HE else 0)
        while nxt[0] < min(max(k + 1 + Nk, min(k + 1 + boost[0], boost[1])), free, 1024):
            if first and Dk and 4 * C0 + 16 <= k and ('kv', k + Dk) in A.vm:
                n = len(A.vm) - 1 - A.vm.index(('kv', k + Dk))
                A(f's_cbranch_vccz L_d{k}')
                A(f's_waitcnt vmcnt({n})')
                A.label(f'L_d{k}')
            first = False
            A.cap(58); kv_load()
    BANK = [0, 2, 1, 3]
    hooks = {}
    def hook(hb, j, f): hooks.setdefault((hb, j if sp else 3), []).append(f)
    def run_hooks(hb, j):
        for f in hooks.get((hb, j), []): f()
    def kblock(hb):
        n = hb & 63; u = SC + n
        for j in range(4):
            k = 4 * hb + j
            A.waitvm(('kv', k))
            for r in range(4):
                c = '0' if r == 0 else f'v{a[j]}'
                A(f'v_dot2_f32_bf16 v{a[j]}, v{R_(k)+r}, v{Q+r}, {c}')
            refill(k)
            if j < 3: run_hooks(hb, j)
        A(f'v_add_f32_dpp v{t0}, v{a[0]}, v{a[0]} row_ror:8 row_mask:0xf bank_mask:0x3')
        A(f'v_add_f32_dpp v{t1}, v{a[2]}, v{a[2]} row_ror:8 row_mask:0xf bank_mask:0x3')
        A(f'v_add_f32_dpp v{t0}, v{a[1]}, v{a[1]} row_ror:8 row_mask:0xf bank_mask:0xc')
        A(f'v_add_f32_dpp v{t1}, v{a[3]}, v{a[3]} row_ror:8 row_mask:0xf bank_mask:0xc')
        A(f'v_add_f32_dpp v{p}, v{t0}, v{t0} row_half_mirror row_mask:0xf bank_mask:0x5')
        A(f'v_add_f32_dpp v{p}, v{t1}, v{t1} row_half_mirror row_mask:0xf bank_mask:0xa')
        A(f'v_add_f32_dpp v{p}, v{p}, v{p} quad_perm:[1,0,3,2]')
        A(f'v_add_f32_dpp v{u}, v{p}, v{p} quad_perm:[2,3,0,1]')
        if n == 0: A(f'v_mov_b32 v{M}, v{u}')
        else: A(f'v_max_f32 v{M}, v{M}, v{u}')
        run_hooks(hb, 3)
    def across_rows(op, r):
        for swap in ('v_permlane32_swap_b32', 'v_permlane16_swap_b32'):
            A(f'v_mov_b32 v{t0}, v{r}')
            A(f'{swap} v{r}, v{t0}')
            A(f'{op} v{r}, v{r}, v{t0}')
    def wave_max():
        A(f'v_max_f32_dpp v{M}, v{M}, v{M} row_ror:4')
        A(f'v_max_f32_dpp v{M}, v{M}, v{M} row_ror:8')
        across_rows('v_max_f32', M)
        A(f'v_mul_f32 v{mx}, {sc}, v{M}')
        A(f'v_mov_b32 v{L}, 0')
        for e in range(8): A(f'v_mov_b32 v{O+e}, 0')
    def prob(n, dst):
        A(f'v_fma_f32 v{dst}, v{SC+n}, {sc}, -v{mx}')
        A(f'v_exp_f32 v{dst}, v{dst}')
    def vblock(hb, ready):
        n = hb & 63
        if not ready: prob(n, p)
        src = SC + n if ready else p
        A(f'v_cvt_pk_bf16_f32 v{plo}, v{src}, 0')
        A(f'v_cvt_pk_bf16_f32 v{phi}, 0, v{src}')
        if not ready: A(f'v_add_f32 v{L}, v{L}, v{p}')
        for j in range(4):
            k = 4 * hb + j
            A.waitvm(('kv', k))
            for r in range(4):
                A(f'v_dot2c_f32_bf16_dpp v{O+2*r}, v{plo}, v{R_(k)+r} row_newbcast:{4*BANK[j]}')
                A(f'v_dot2c_f32_bf16_dpp v{O+2*r+1}, v{phi}, v{R_(k)+r} row_newbcast:{4*BANK[j]}')
            refill(k)
            run_hooks(hb, j)
    def merge_o():
        for e in range(4): A(f'v_permlane32_swap_b32 v{O+e}, v{O+4+e}')
        for e in range(4): A(f'v_add_f32 v{O+e}, v{O+e}, v{O+4+e}')
        for e in range(2): A(f'v_permlane16_swap_b32 v{O+e}, v{O+2+e}')
        for e in range(2): A(f'v_add_f32 v{O+e}, v{O+e}, v{O+2+e}')
    def write_ml(br):
        A(f'v_add_f32_dpp v{L}, v{L}, v{L} row_ror:4')
        A(f'v_add_f32_dpp v{L}, v{L}, v{L} row_ror:8')
        across_rows('v_add_f32', L)
        A(f's_lshl_b32 s38, {sw}, 3')
        A(f'v_mov_b32 v{t0}, s38')
        A(f'ds_write_b64 v{t0}, v[{M}:{L}] offset:{ML[br]}')
    def weights(T, own=None):
        A(f'v_max3_f32 v{t0}, v{T}, v{T+2}, v{T+4}')
        A(f'v_max_f32 v{t0}, v{t0}, v{T+6}')
        A(f'v_mul_f32 v{t0}, {sc}, v{t0}')
        if own: A(f'v_fma_f32 v{own}, v{M}, {sc}, -v{t0}')
        for k in range(4): A(f'v_fma_f32 v{T+2*k}, v{T+2*k}, {sc}, -v{t0}')
        if own: A(f'v_exp_f32 v{own}, v{own}')
        for k in range(4): A(f'v_exp_f32 v{T+2*k}, v{T+2*k}')
        A(f'v_mul_f32 v{t0}, v{T}, v{T+1}')
        for k in range(1, 4): A(f'v_fmac_f32 v{t0}, v{T+2*k}, v{T+2*k+1}')
        A(f'v_rcp_f32 v{t0}, v{t0}')
    def wo_load(br, i):
        rg, ch = i >> 1, i & 1
        if i == 0:
            base(sW, PWO[br])
            A(f's_lshl_b32 s38, {sh}, 18')
            A(f's_lshl_b32 {swob}, {sw}, 9')
            A(f's_add_u32 {swob}, {swob}, s38')
        if i % 8 == 0:
            A(f's_lshl_b32 {swo}, s{STG + i//8}, 13')
            A(f's_add_u32 {swo}, {swo}, {swob}')
        A.cap(58)
        ar = 8 * (2 * (rg >> 1) + ch) + 4 * (rg & 1) if sm else 4 * i
        A(f'buffer_load_dwordx4 a[{ar}:{ar+3}], v{vWO}, {sW}, {swo} offen offset:{(rg&1)*2048 + 256*ch} {wpol}', tag=('wo', br, i))
        if i % 4 == 3: A(f's_add_u32 {swo}, {swo}, 4096')
    GS = TQ; vRD = TQ + 1; DU = TQ + 2; MQ = TQ + 4; IX = TQ + 6
    def o_setup():
        A(f'v_lshrrev_b32 v{t1}, 4, v{vKV}')
        A(f's_lshl_b32 s38, s{STG}, 1')
        A(f'v_add_u32 v{t1}, s38, v{t1}')
        A(f'v_and_b32 v{t1}, 15, v{t1}')
        A(f'v_lshrrev_b32 v{vRD}, 8, v{vKV}')
        if sm:
            A(f'v_and_b32 v{t0}, 1, v{vRD}')
            A(f'v_lshrrev_b32 v{vRD}, 1, v{vRD}')
            A(f'v_lshlrev_b32 v{vRD}, 2, v{vRD}')
            A(f'v_lshl_add_u32 v{vRD}, v{t0}, 8, v{vRD}')
            A(f'v_lshl_add_u32 v{vRD}, v{t1}, 3, v{vRD}')
            A(f'v_bfe_u32 v{t0}, v{vKV}, 6, 1')
            A(f'v_mul_u32_u24 v{MQ+1}, 0xffff, v{t0}')
            A(f'v_xor_b32 v{MQ}, 0xffff, v{MQ+1}')
            A(f'v_bfe_u32 v{t0}, v{vKV}, 4, 2')
            A(f'v_xor_b32 v{t1}, 1, v{t0}')
            A(f'v_lshl_add_u32 v{t0}, v{t1}, 2, v{t0}')
            A(f'v_mul_u32_u24 v{IX}, 0x1111, v{t0}')
        else:
            A(f'v_lshlrev_b32 v{vRD}, 7, v{vRD}')
            A(f'v_lshl_add_u32 v{vRD}, v{t1}, 3, v{vRD}')
    def o_fetch(br, T):
        for k in range(4):
            if sm: A(f'ds_read2_b32 v[{T+2*k}:{T+2*k+1}], v{vRD} offset0:{(ST[br]+512*k)//4 - (ST[br]//1024)*256} offset1:{(ST[br]+512*k)//4 - (ST[br]//1024)*256 + 32}') if False else \
                   A(f'ds_read_b32 v{T+2*k}, v{vRD} offset:{ST[br]+512*k}') or A(f'ds_read_b32 v{T+2*k+1}, v{vRD} offset:{ST[br]+512*k+128}')
            else: A(f'ds_read_b64 v[{T+2*k}:{T+2*k+1}], v{vRD} offset:{ST[br]+512*k}')
    NRD = 8 if sm else 4
    def o_pack(src):
        for e in range(2): A(f'v_cvt_pk_bf16_f32 v{DU+e}, v{src+e}, v{src+e}')
    NG = 16 if sm else 32
    def o_frag(rg):
        for r in range(4):
            if sm: A(f'v_and_b32_dpp v{FR[rg & 1]+r}, v{DU + (r >> 1)}, v{MQ + (r & 1)} row_newbcast:{rg}')
            else: A(f'v_and_b32_dpp v{FR[rg & 1]+r}, v{DU + (rg & 1)}, v{MK+r} row_newbcast:{rg >> 1}')
    def o_zero(acc):
        if sm:
            for ch in range(2):
                for e in range(4): A(f'v_mov_b32 v{acc[ch]+e}, 0')
    def o_mm(rg, acc):
        for ch in range(2):
            i = 2 * rg + ch
            if sm:
                A(f'v_smfmac_f32_16x16x64_bf16 v[{acc[ch]}:{acc[ch]+3}], v[{FR[rg & 1]}:{FR[rg & 1]+3}], a[{8*i}:{8*i+7}], v{IX}')
                continue
            c = '0' if rg == 0 else f'v[{acc[ch]}:{acc[ch]+3}]'
            A(f'v_mfma_f32_16x16x32_bf16 v[{acc[ch]}:{acc[ch]+3}], v[{FR[rg & 1]}:{FR[rg & 1]+3}], a[{4*i}:{4*i+3}], {c}')
    def pace(hb): pass
    def pace_(hb):
        if not DL or hb < C0 or hb > C1: return
        ph = (hb - C0) % CP; val = 2 + (hb - C0) // CP
        if ph == 0:
            def body():
                A(f's_mov_b32 s100, {val}')
                A(f's_atomic_umax s100, s[20:21], {sflo}')
                bit = 1 << (10 + int(str(hc)[(val - 2) % len(str(hc))]))
                if NP == 16:
                    A(f's_and_b32 s60, {sflo}, {hex(~(0x380 | bit) & 0xffffffff)}')
                    for k in range(16):
                        A(f's_add_u32 s38, s60, {128 * (k & 7) + bit * (k >> 3)}')
                        A(f's_load_dword s{SL[k]}, s[20:21], s38 glc')
                elif NP < 8:
                    ms = [[3, 5, 6, 7, 1, 2, 4], [1, 6, 4, 3, 7, 5, 2], [7, 2, 5, 4, 3, 6, 1]][val % 3]
                    for k in range(NP):
                        A(f's_xor_b32 s38, {sflo}, {hex((ms[k] << 7) | (bit if (k ^ val) & 1 else 0))}')
                        A(f's_load_dword s{SL[k]}, s[20:21], s38 glc')
                else:
                    A(f's_and_b32 s60, {sflo}, {hex(~0x380 & 0xffffffff)}')
                    A(f's_xor_b32 s61, s60, {bit}')
                    for k in range(8):
                        A(f's_add_u32 s38, {"s61" if (k ^ (k >> 1) ^ val) & 1 else "s60"}, {128 * k}')
                        A(f's_load_dword s{SL[k]}, s[20:21], s38 glc')
            only(val % 4, f'p{hb}', body)
        if ph == 2:
            def body():
                A('s_mov_b32 s101, 0')
                A('s_waitcnt lgkmcnt(0)')
                for k in range(NP):
                    A(f's_cmp_ge_u32 s{SL[k]}, {val}')
                    A('s_addc_u32 s101, s101, 0')
                A(f's_cmp_lt_u32 s101, {RK}')
                A('s_cselect_b32 s38, -1, 0')
                A(f'v_mov_b32 v{t0}, 0')
                A(f'v_mov_b32 v{t1}, s38')
                A(f'ds_write_b32 v{t0}, v{t1} offset:{MD}')
            only(val % 4, f'p{hb}', body)
        if ph == 3:
            A(f'v_mov_b32 v{t0}, 0')
            A(f'ds_read_b32 v{vMD}, v{t0} offset:{MD}')
        if ph == 4:
            A('s_waitcnt lgkmcnt(0)')
            A(f'v_cmp_ne_u32 vcc, 0, v{vMD}')
    qld = {}; qmm = {}; ald = {}; bld = {}
    for i in range(64):
        h_ = 0 if i < 8 else QS + int((i - 8) / QR)
        qld.setdefault(h_, []).append(i)
        qmm.setdefault(max(h_ + 3, QS + 1), []).append(i)
        off = lambda r: int(i / r) if not wb else (i // wb if i < 8 else WG + int((i - 8) / r))
        ha = AS + off(AR); assert ha >= max(h_ + 3, QS + 1) and ha + 2 <= 129 + CB + i // 4
        ald.setdefault(ha, []).append(i)
        hbb = 128 + BS + off(BR); assert hbb >= 129 + CB + i // 4 and hbb < 250
        bld.setdefault(hbb, []).append(i)
    QE = max(qmm) + 1
    assert QE + 4 < 128 and AS > max(qld) and max(ald) < min(bld) and QS >= 9 and C0 > 24
    def extras(hb): pass
    for hb_ in range(256):
        hook(hb_, 0, lambda hb=hb_: pace_(hb))
        if pst == 2 and hb_ in (1, 3, 7, 11, 19, 31): hook(hb_, 3, lambda hb=hb_: stamp(1 + (1, 3, 7, 11, 19, 31).index(hb), True))
        if BP and hb_ >= max(B0, HJ) and (hb_ - B0) % BP == 0:
            for j_ in str(BJ): hooks.setdefault((hb_, int(j_)), []).insert(0, lambda: A('s_barrier'))
        hook(hb_, 1, lambda hb=hb_: extras_(hb, 1))
        hook(hb_, 2, lambda hb=hb_: extras_(hb, 2))
        hook(hb_, 3, lambda hb=hb_: extras_(hb, 3))
    def extras_(hb, part):
        if part == 1:
            for i in qmm.get(hb, []):
                if hb == QS + 1 and i == qmm[hb][0]: x_dup(1)
                q_frag(1, i); q_mm(1, i)
            return
        if part == 2:
            if hb == 0: base(sW, PWQ[1]); base(sX, PX[1])
            for i in qld.get(hb, []):
                A.cap(58); wq_load(1, i)
            for i in ald.get(hb, []): wo_load(0, i)
            for i in bld.get(hb, []): wo_load(1, i)
            return
        if hb == 0: x_load(1)
        if hb == QE: q_write(1)
        if hb == QE + 4:
            A('s_waitcnt lgkmcnt(0)')
            if not dbg & 8: A('s_barrier')
            q_read(1, [TQ + 4 * k for k in range(8)], QB)
    def front(v, early, lt, bst):
        for _ in range(early): kv_load()
        rest = list(range(8, 64))
        pstamp(3)
        x_dup(0)
        pstamp(4)
        while rest and len(A.vm) < min(WIN + early, 58): wq_load(0, rest.pop(0))
        pstamp(5)
        q_frag(0, 0)
        for jj in range(64):
            if jj < 63: q_frag(0, jj + 1)
            q_mm(0, jj)
            while rest and len(A.vm) < WIN: wq_load(0, rest.pop(0))
        pstamp(6)
        assert not rest and 'clr' not in A.vm
        if cpos == 1: clear_inbox()
        q_write(0)
        for _ in range(lt): kv_load()
        A('s_waitcnt lgkmcnt(0)')
        A('s_barrier')
        q_read(0, [12, 16, 48, 52, 60, SC, SC + 4, SC + 8], Q)
        A(f's_or_b32 s38, {sw}, {sh}')
        A('s_cmp_eq_u32 s38, 0')
        A(f's_cbranch_scc0 L_nosig{v}')
        A(f's_lshl_b32 s38, {sb}, 2')
        A(f'v_mov_b32 v{t0}, s38')
        A(f'v_mov_b32 v{t1}, 1')
        A('s_mov_b64 exec, 1')
        A(f'global_store_dword v{t0}, v{t1}, {sdbg} sc1'); A.vm.pop()
        A('s_mov_b64 exec, -1')
        A.label(f'L_nosig{v}')
        stamp(1)
        boost[:] = bst
        for hb in range(HJ):
            kblock(hb); extras(hb)
        boost[:] = [0, 0]
    if alt:
        if alt == 1:
            A(f's_bitcmp1_b32 s2, {3 + ab}')
            A('s_cbranch_scc1 L_frontB')
            fronts = [('A', 0, late, [NA, CA]), ('B', RB - R1, LB, [45, RB + LB + N + NB])]
        else:
            A('s_lshr_b32 s37, s2, 3')
            A('s_mul_i32 s38, s37, 11')
            A('s_lshr_b32 s38, s38, 5')
            A('s_mul_i32 s38, s38, 3')
            A('s_sub_u32 s37, s37, s38')
            A('s_cmp_eq_u32 s37, 1')
            A('s_cbranch_scc1 L_frontB')
            A('s_cmp_eq_u32 s37, 2')
            A('s_cbranch_scc1 L_frontC')
            fronts = [('A', 0, late, [NA, CA]), ('B', RB - R1, LB, [45, RB + LB + NB3]), ('C', RC - R1, LC, [45, RC + LC + N])]
        vm0, n0 = list(A.vm), nxt[0]
        for i, f in enumerate(fronts):
            A.vm, nxt[0] = list(vm0), n0
            if i: A.label(f'L_front{f[0]}')
            front(*f)
            if i == 0: vmA, nA = list(A.vm), nxt[0]
            assert A.vm == vmA and nxt[0] == nA, (A.vm, vmA)
            if i + 1 < len(fronts): A('s_branch L_join')
        A.label('L_join')
        A('s_nop 1')
    else:
        front('A', 0, late, [32, R1 + late + N])
    for hb in range(HJ, 64):
        kblock(hb); pace(hb); extras(hb)
        if hb == 14:
            def body():
                A(f'global_load_dword v{vGO}, v{vGO+1}, {sdbg} sc1'); A.vm.pop()
            only(0, 'g', body)
        if hb == 20:
            def body():
                A.label('L_go')
                A(f'v_cmp_eq_u32 vcc, 0, v{vGO}')
                A('s_cbranch_vccz L_gone')
                A(f'global_load_dword v{vGO}, v{vGO+1}, {sdbg} sc1'); A.vm.pop()
                countdown('L_bail')
                A('s_waitcnt vmcnt(0)')
                A('s_branch L_go')
                A.label('L_gone')
            only(0, 'h', body)
        if hb == 24:
            assert 'clr' not in A.vm
            A('s_barrier')
            def body():
                A('s_mov_b32 s100, 1')
                A(f's_add_u32 s101, {sflo}, {WS_RD - WS_FL}')
                A('s_atomic_umax s100, s[20:21], s101')
            only(0, 'i', body)
    stamp(2)
    wave_max()
    for hb in range(64, 128):
        vblock(hb, False); pace(hb); extras(hb)
    stamp(3)
    write_ml(0)
    merge_o()
    A(f'ds_write_b64 v{vST}, v[{O}:{O+1}] offset:{ST[0]}')
    for r in range(4): A(f'v_mov_b32 v{Q+r}, v{QB+r}')
    for rg_ in range(NG):
        def om(rg=rg_):
            A.waitvm(('wo', 0, (64 // NG) * (rg + 1) - 1))
            o_frag(rg); o_mm(rg, ACC)
        hooks.setdefault((129 + CB + rg_ * 16 // NG, rg_ & 1 if NG == 32 else 0), []).insert(0, om)
    for hb in range(128, 192):
        kblock(hb); pace(hb)
        n = hb - 128
        if n == CB and not dbg & 4:
            T = XD[1]
            o_setup()
            A('s_waitcnt lgkmcnt(0)')
            if not dbg & 1: A('s_barrier')
            A(f'v_mov_b32 v{t0}, 0')
            for k in range(2): A(f'ds_read_b128 v[{T+4*k}:{T+4*k+3}], v{t0} offset:{ML[0]+16*k}')
            o_fetch(0, T + 8)
            o_zero(ACC)
            A(f's_waitcnt lgkmcnt({NRD})')
            weights(T)
            A('s_waitcnt lgkmcnt(0)')
            for e in range(2):
                A(f'v_mul_f32 v{DU+e}, v{T}, v{T+8+e}')
                for k in range(1, 4): A(f'v_fmac_f32 v{DU+e}, v{T+2*k}, v{T+8+2*k+e}')
            for e in range(2): A(f'v_mul_f32 v{DU+e}, v{DU+e}, v{t0}')
            o_pack(DU)
        extras(hb)
        if n == 56:
            A(f'v_lshrrev_b32 v{PN}, 7, v{vKV}')
            A(f'v_and_b32 v{PN}, 3, v{PN}')
            A(f'v_lshlrev_b32 v{PN}, 13, v{PN}')
            A(f'v_and_b32 v{PN+1}, 0x70, v{vKV}')
            A(f'v_lshl_add_u32 v{PN}, v{PN+1}, 3, v{PN}')
            A(f's_lshl_b32 s37, {sb}, 10')
            A(f's_add_u32 s37, s37, {WS_RD}')
            def body():
                A(f'buffer_load_dword v{PN+1}, v{PN}, {sP}, s37 offen sc1'); A.vm.pop()
            only(0, 'f', body)
    stamp(4)
    ACB = [TQ + 8, TQ + 12]
    wave_max()
    for hb in range(192, 256):
        n = hb - 192
        if n == 0:
            prob(0, SC); A(f'v_add_f32 v{L}, v{L}, v{SC}')
        if n < 16:
            for j in range(4):
                m = 4 * n + j + 1
                if m < 64:
                    def cv(m=m):
                        prob(m, SC + m); A(f'v_add_f32 v{L}, v{L}, v{SC+m}')
                    hook(hb, j, cv)
        vblock(hb, True); pace(hb); extras(hb)
        if n == 8:
            def body():
                A('s_mov_b64 s[60:61], vcc')
                A.label('L_rdy')
                A(f'v_cmp_eq_u32 vcc, 0, v{PN+1}')
                A('s_cbranch_vccz L_rdyok')
                A(f'buffer_load_dword v{PN+1}, v{PN}, {sP}, s37 offen sc1'); A.vm.pop()
                countdown('L_end')
                A('s_waitcnt vmcnt(0)')
                A('s_branch L_rdy')
                A.label('L_rdyok')
                A('s_mov_b64 vcc, s[60:61]')
            only(0, 'r', body)
        if n == 16: write_ml(1)
        if n == NL:
            T = XD[1]
            A('s_waitcnt lgkmcnt(0)')
            if not dbg & 16: A('s_barrier')
            A(f'v_mov_b32 v{t0}, 0')
            for k in range(2): A(f'ds_read_b128 v[{T+4*k}:{T+4*k+3}], v{t0} offset:{ML[1]+16*k}')
            A(f'v_lshrrev_b32 v5, 4, v{vKV}')
            A('v_and_b32 v7, 15, v5')
            A('v_lshrrev_b32 v6, 4, v5')
            A('v_lshrrev_b32 v9, 2, v7')
            A('v_lshlrev_b32 v9, 13, v9')
            A('v_and_b32 v8, 3, v7')
            A('v_lshl_add_u32 v9, v8, 5, v9')
            A('v_lshl_add_u32 v9, v6, 4, v9')
            A(f's_lshl_b32 s96, {sb}, 18')
            A(f's_lshl_b32 s38, {sw}, 16')
            A('s_add_u32 s96, s96, s38')
            A(f's_lshl_b32 s38, {sh}, 7')
            A('s_add_u32 s96, s96, s38')
            A('s_add_u32 s97, s96, 32768')
            A('s_add_u32 s98, s96, 4096')
            A('s_add_u32 s99, s97, 4096')
            A('v_and_b32 v10, 7, v5')
            A('v_lshrrev_b32 v11, 5, v5')
            A('v_lshlrev_b32 v10, 3, v10')
            A('v_lshl_add_u32 v10, v11, 2, v10')
            A(f's_lshl_b32 s94, {sb}, 12')
            A(f's_lshl_b32 s38, {sh}, 6')
            A('s_add_u32 s94, s94, s38')
            A(f's_xor_b32 s38, {sw}, 1')
            A('s_lshl_b32 s39, s38, 11')
            A('s_add_u32 s94, s94, s39')
            A('s_lshl_b32 s38, s38, 12')
            A(f's_add_u32 s95, {sinb}, s38')
            A('s_waitcnt lgkmcnt(0)')
            o_zero(ACB)
            weights(T, GS)
            A(f'v_mul_f32 v{GS}, v{GS}, v{t0}')
    assert not A.vm
    stamp(5)
    T = RING
    def publish(acc, s0, s1):
        A('s_mov_b64 exec, 0xffffffff')
        A(f'buffer_store_dwordx4 v[{acc[0]}:{acc[0]+3}], v9, {sP}, {s0} offen sc1')
        A(f'buffer_store_dwordx4 v[{acc[1]}:{acc[1]+3}], v9, {sP}, {s1} offen sc1')
        A('s_mov_b64 exec, -1')
    merge_o()
    A(f'v_pk_mul_f32 v[{O}:{O+1}], v[{O}:{O+1}], v[{GS}:{GS+1}] op_sel_hi:[1,0]')
    A(f'ds_write_b64 v{vST}, v[{O}:{O+1}] offset:{ST[1]}')
    A('s_waitcnt lgkmcnt(0)')
    A('s_barrier')
    o_fetch(1, T)
    publish(ACC, 's96', 's97')
    A(f's_waitcnt lgkmcnt({NRD // 2})')
    A(f'v_pk_add_f32 v[{T}:{T+1}], v[{T}:{T+1}], v[{T+2}:{T+3}]')
    A('s_waitcnt lgkmcnt(0)')
    A(f'v_pk_add_f32 v[{T+4}:{T+5}], v[{T+4}:{T+5}], v[{T+6}:{T+7}]')
    A(f'v_pk_add_f32 v[{T}:{T+1}], v[{T}:{T+1}], v[{T+4}:{T+5}]')
    o_pack(T)
    o_frag(0)
    for rg in range(NG):
        if rg < NG - 1: o_frag(rg + 1)
        o_mm(rg, ACB)
    publish(ACB, 's98', 's99')
    stamp(6)
    A(f's_cmp_gt_u32 {sw}, 1')
    A(f's_cbranch_scc1 {"L_stamp" if stamps else "L_end"}')
    T = RING + 32
    def missing(U, k, acc):
        A(f'v_max3_u32 v11, v{U+4*k}, v{U+4*k+1}, v{U+4*k+2}')
        A(f'v_max_u32 v11, v11, v{U+4*k+3}')
        A('v_cmp_eq_u32 vcc, -1, v11')
        A('s_cmp_lg_u64 vcc, 0')
        A(f's_cselect_b32 s38, {1<<k}, 0')
        A(f's_or_b32 {acc}, {acc}, s38')
    A(f's_mov_b32 {smask}, 15')
    A.label('L_poll')
    for k in range(4):
        A(f's_bitcmp1_b32 {smask}, {k}')
        A(f's_cbranch_scc0 L_skipld{k}')
        A(f'buffer_load_dwordx4 v[{T+4*k}:{T+4*k+3}], v{vKV}, {sP}, s95 offen offset:{k*1024} sc1')
        A.label(f'L_skipld{k}')
    if pp:
        A(f's_sleep {pp}')
        A(f's_mov_b32 s39, {smask}')
        for k in range(4):
            A(f's_bitcmp1_b32 {smask}, {k}')
            A(f's_cselect_b32 s38, s95, 0x40000000')
            A(f'buffer_load_dwordx4 v[{T+16+4*k}:{T+19+4*k}], v{vKV}, {sP}, s38 offen offset:{k*1024} sc1')
        A('s_waitcnt vmcnt(4)')
    else: A('s_waitcnt vmcnt(0)')
    A.vm = []
    if fp and not pp:
        A(f'v_max3_u32 v11, v{T}, v{T+1}, v{T+2}')
        A(f'v_max3_u32 v8, v{T+3}, v{T+4}, v{T+5}')
        for k in range(6, 14, 4):
            A(f'v_max3_u32 v11, v11, v{T+k}, v{T+k+1}')
            A(f'v_max3_u32 v8, v8, v{T+k+2}, v{T+k+3}')
        A(f'v_max3_u32 v11, v11, v{T+14}, v{T+15}')
        A('v_max_u32 v11, v11, v8')
        A('v_cmp_eq_u32 vcc, -1, v11')
        A('s_cbranch_vccz L_sum')
    A(f's_mov_b32 {smask}, 0')
    for k in range(4): missing(T, k, smask)
    A(f's_cmp_eq_u32 {smask}, 0')
    A('s_cbranch_scc1 L_sum')
    if pp:
        A('s_waitcnt vmcnt(0)')
        for k in range(4):
            A(f's_bitcmp1_b32 {smask}, {k}')
            A(f's_cbranch_scc0 L_keep{k}')
            for e in range(4): A(f'v_mov_b32 v{T+4*k+e}, v{T+16+4*k+e}')
            A.label(f'L_keep{k}')
        A(f's_mov_b32 {smask}, 0')
        for k in range(4): missing(T, k, smask)
        A(f's_cmp_eq_u32 {smask}, 0')
        A('s_cbranch_scc1 L_sum')
    elif slp: A(f's_sleep {slp}')
    countdown('L_end')
    A('s_branch L_poll')
    A.label('L_sum')
    for st in (8, 4):
        for k in range(0, st, 2): A(f'v_pk_add_f32 v[{T+k}:{T+k+1}], v[{T+k}:{T+k+1}], v[{T+st+k}:{T+st+k+1}]')
    for e in range(4): A(f'v_add_f32_dpp v{T+e}, v{T+e}, v{T+e} row_ror:8')
    for e in range(2): A(f'v_permlane32_swap_b32 v{T+e}, v{T+2+e}')
    for e in range(2): A(f'v_add_f32 v{T+e}, v{T+e}, v{T+2+e}')
    for e in range(2): A(f'v_mov_b32 v{T+2+e}, v{T+e}')
    for e in range(2): A(f'v_permlane16_swap_b32 v{T+e}, v{T+2+e}')
    for e in range(2): A(f'v_add_f32 v{T+e}, v{T+e}, v{T+2+e}')
    A(f'v_cvt_pk_bf16_f32 v{T}, v{T}, v{T+1}')
    A('s_mov_b32 exec_lo, 0xff'); A('s_mov_b32 exec_hi, 0xff')
    A(f'buffer_store_dword v{T}, v10, {sOut}, s94 offen')
    if pad:
        if pad <= 100:
            A('s_memrealtime s[60:61]')
            A('s_waitcnt lgkmcnt(0)')
            A('s_sub_u32 s60, s60, s62')
            A(f's_mul_i32 s63, s60, {pad}')
        else: A(f's_mov_b32 s63, {pad}')
        A.label('L_pad')
        A('s_sleep 8')
        A('s_memrealtime s[60:61]')
        A('s_waitcnt lgkmcnt(0)')
        A('s_sub_u32 s60, s60, s62')
        A('s_cmp_lt_u32 s60, s63')
        A('s_cbranch_scc1 L_pad')
    if stamps:
        A('s_mov_b64 exec, -1')
        A.label('L_stamp')
        A('s_lshl_b32 s37, s2, 2')
        stamp(7)
        A(f's_add_u32 s37, s37, {sw}')
        A('s_lshl_b32 s37, s37, 6')
        A('s_add_u32 s37, s37, 0x4000000')
        A('v_mov_b32 v4, s37')
        for k in range(8):
            A(f'v_mov_b32 v{8+2*k}, s{STS[k]}'); A(f'v_mov_b32 v{9+2*k}, 0')
        for k in range(4): A(f'global_store_dwordx4 v4, v[{8+4*k}:{11+4*k}], s[20:21] offset:{16*k}')
    A.label('L_end')
    A('s_endpgm')
    A.raw('.section .rodata,"a"')
    A.raw('.p2align 6')
    A.raw(f'.amdhsa_kernel {KN}')
    for l in ('next_free_vgpr 512', 'next_free_sgpr 102', 'accum_offset 256', 'group_segment_fixed_size 0', 'kernarg_size 104',
              'user_sgpr_count 2', 'user_sgpr_kernarg_segment_ptr 1', 'system_sgpr_workgroup_id_x 1'):
        A.raw('  .amdhsa_' + l)
    A.raw('.end_amdhsa_kernel')
    return A.text()

if __name__ == '__main__':
    for spec in sys.argv[1:]:
        kw = {}
        for kv in spec.split(','):
            if not kv or kv == 'x': continue
            k, v = kv.split('=')
            kw[k] = int(v) if v.lstrip('-').isdigit() else (float(v) if v.replace('.', '').isdigit() else v.replace('+', ' ').replace('none', ''))
        name = 'k12_' + spec.replace('=', '').replace(',', '_').replace('+', '') + '.s'
        open(name, 'w').write(gen(**kw))
        print(name)
```
